```python
import torch

def _softmax(x, axis=-1):
    return torch.softmax(x, dim=axis)
def _gelu(x):
    return torch.nn.functional.gelu(x, approximate="tanh")
def _silu(x):
    return torch.nn.functional.silu(x)
def _sigmoid(x):
    return torch.sigmoid(x)
def _layernorm(x, axis=-1, eps=1e-5):
    m = x.mean(dim=axis, keepdim=True)
    v = x.var(dim=axis, keepdim=True, unbiased=False)
    return (x - m) / torch.sqrt(v + eps)
def _scatter_add(tgt, idx, src, axis=0):
    return tgt.clone().index_add_(axis, idx, src)
def _segment_sum(src, seg, n):
    out = torch.zeros((n,) + src.shape[1:], dtype=src.dtype)
    return out.index_add_(0, seg, src)
def _pad(x, pw):
    flat = tuple(v for pair in reversed(pw) for v in pair)
    return torch.nn.functional.pad(x, flat)

kernel_name = 'standalone__modern_conv_block_convnext_v2__vision'

def setup_inputs():

    _w = (lambda a: (lambda t: t.to(torch.bfloat16) if t.is_floating_point() else t)(torch.as_tensor(a)))
    H = W = 224
    C = 192
    K = 3
    return {
        "x": _w((lambda *s: torch.randn(*s, dtype=torch.bfloat16) * 0.05)(1, H, W, C)),
        "dw": _w((lambda *s: torch.randn(*s, dtype=torch.bfloat16) * 0.05)(K, K, C)),
        "w1": _w((lambda *s: torch.randn(*s, dtype=torch.bfloat16) * 0.05)(C, 4 * C)),
        "w2": _w((lambda *s: torch.randn(*s, dtype=torch.bfloat16) * 0.05)(4 * C, C)),
        "grn_gamma": _w((lambda *s: torch.randn(*s, dtype=torch.bfloat16) * 0.05)(4 * C)),
        "grn_beta": _w((lambda *s: torch.randn(*s, dtype=torch.bfloat16) * 0.05)(4 * C)),
    }

def reference(x, dw, w1, w2, grn_gamma, grn_beta):
    B, H, W, C = x.shape
    K = dw.shape[0]
    pad = K // 2
    xp = _pad(x, ((0,0),(pad,pad),(pad,pad),(0,0)))
    out = torch.zeros_like(x)
    for i in range(K):
        for j in range(K):
            out = out + xp[:, i:i+H, j:j+W, :] * dw[i, j][None, None, None, :]
    h = _layernorm(out, axis=-1)
    h = torch.einsum('bhwc,ce->bhwe', h, w1)
    h = _gelu(h)
    gx = torch.sqrt((h * h).sum(axis=(1, 2), keepdims=True) + 1e-6)
    nx = gx / (gx.mean(axis=-1, keepdims=True) + 1e-6)
    h = grn_gamma * (h * nx) + grn_beta + h
    h = torch.einsum('bhwe,ec->bhwc', h, w2)
    return x + h
```

```python
import re

TRANS = ("v_exp_f32", "v_log_f32", "v_rcp_f32", "v_rsq_f32", "v_sqrt_f32", "v_sin_f32", "v_cos_f32")
REG_RE = re.compile(r"^(-|\|)?([vas])(\d+)\|?$")
RNG_RE = re.compile(r"^(-|\|)?([vas])\[(\d+):(\d+)\]\|?$")


def regs_of(tok):
    tok = tok.strip()
    m = REG_RE.match(tok)
    if m:
        return [(m.group(2), int(m.group(3)))]
    m = RNG_RE.match(tok)
    if m:
        return [(m.group(2), i) for i in range(int(m.group(3)), int(m.group(4)) + 1)]
    if tok == "vcc":
        return [("s", 106), ("s", 107)]
    if tok == "vcc_lo":
        return [("s", 106)]
    if tok == "vcc_hi":
        return [("s", 107)]
    if tok == "exec":
        return [("x", 0), ("x", 1)]
    if tok == "exec_lo":
        return [("x", 0)]
    if tok == "exec_hi":
        return [("x", 1)]
    if tok == "m0":
        return [("m", 0)]
    return []


class Ins:
    __slots__ = ("text", "op", "kind", "rd", "wr", "states", "passes", "srcC", "dpp", "trans", "stdata", "lds_dma", "ab")

    def __init__(self, text):
        self.text = text
        parts = text.split(None, 1)
        op = parts[0]
        self.op = op
        rest = parts[1] if len(parts) > 1 else ""
        toks = [t.strip() for t in rest.split(",")] if rest else []
        mods = ""
        if toks:
            last = toks[-1].split(None, 1)
            ops = []
            for i, t in enumerate(toks):
                sp = t.split(None, 1)
                ops.append(sp[0])
                if len(sp) > 1:
                    mods = sp[1] + "," + ",".join(toks[i + 1:])
                    break
            toks = ops
        self.states = 1
        self.passes = 0
        self.srcC = []
        self.ab = []
        self.dpp = False
        self.trans = False
        self.stdata = []
        self.lds_dma = False
        rd, wr = [], []
        R = [regs_of(t) for t in toks]
        if op.startswith("v_mfma"):
            self.kind = "mfma"
            self.passes = 8 if "32x32x16" in op else 4
            wr = R[0]
            self.ab = R[1] + R[2]
            self.srcC = R[3]
            rd = R[1] + R[2] + R[3]
        elif op.startswith("v_"):
            self.kind = "valu"
            base = op.replace("_e32", "").replace("_e64", "").replace("_dpp", "").replace("_sdwa", "")
            self.trans = base in TRANS
            self.dpp = ("_dpp" in op) or ("row_" in mods) or ("quad_perm" in mods)
            if "permlane" in op and "swap" in op:
                wr = R[0] + R[1]
                rd = R[0] + R[1]
            elif op.startswith("v_cmp"):
                wr = R[0]
                rd = sum(R[1:], [])
            elif base in ("v_add_co_u32", "v_sub_co_u32", "v_addc_co_u32", "v_subb_co_u32"):
                wr = R[0] + R[1]
                rd = sum(R[2:], [])
            else:
                wr = R[0]
                rd = sum(R[1:], [])
                if base in ("v_fmac_f32", "v_pk_fmac_f16", "v_dot2c_f32_bf16") or self.dpp:
                    rd = rd + R[0]
                if base == "v_cndmask_b32" and len(R) == 3:
                    rd = rd + regs_of("vcc")
        elif op.startswith("ds_"):
            self.kind = "ds"
            if op.startswith("ds_read") or op.startswith("ds_bpermute") or op.startswith("ds_swizzle"):
                wr = R[0]
                rd = sum(R[1:], [])
            else:
                rd = sum(R, [])
        elif op.startswith("buffer_") or op.startswith("global_"):
            self.kind = "vmem"
            ml = mods.replace(",", " ").split()
            if "lds" in ml or toks[-1] == "lds":
                self.lds_dma = True
                rd = sum(R, []) + [("m", 0)]
            elif "_load_" in op:
                wr = R[0]
                rd = sum(R[1:], [])
                if "d16" in op:
                    rd = rd
            elif "_store_" in op:
                rd = sum(R, [])
                if "x4" in op or "x3" in op:
                    self.stdata = R[0] if op.startswith("buffer_") else R[1]
            elif "_atomic_" in op:
                rd = sum(R, [])
                if "sc0" in ml:
                    wr = R[0]
            else:
                raise ValueError(text)
        elif op == "s_nop":
            self.kind = "nop"
            self.states = int(toks[0], 0) + 1
        elif op == "s_waitcnt" or op == "s_barrier" or op.startswith("s_branch") or op.startswith("s_cbranch") \
                or op in ("s_endpgm", "s_sleep", "s_setprio"):
            self.kind = "ctl"
        elif op.startswith("s_load") or op == "s_memtime" or op == "s_memrealtime":
            self.kind = "smem"
            wr = R[0]
            rd = sum(R[1:], [])
        elif op.startswith("s_"):
            self.kind = "salu"
            if op.startswith("s_cmp") or op.startswith("s_bitcmp"):
                rd = sum(R, [])
            else:
                wr = R[0]
                rd = sum(R[1:], [])
        else:
            raise ValueError("unknown instr " + text)
        self.rd = set(rd)
        self.wr = set(wr)


def need_states(p, c):
    n = 0
    if p.kind == "valu":
        vw = {r for r in p.wr if r[0] in "va"}
        sw = {r for r in p.wr if r[0] == "s"}
        if c.kind == "mfma" and (vw & c.rd):
            n = max(n, 2)
        if c.kind == "valu":
            if p.trans and not c.trans and (vw & c.rd):
                n = max(n, 1)
            if (c.dpp or "permlane" in c.op) and (vw & c.rd):
                n = max(n, 2)
            if ("readlane" in c.op or "readfirstlane" in c.op) and (vw & c.rd):
                n = max(n, 1)
            if sw & c.rd:
                n = max(n, 4 if ("readlane" in c.op or "writelane" in c.op) else 2)
        if c.kind == "vmem" and (sw & c.rd):
            n = max(n, 5)
        if c.kind in ("salu",) and (sw & c.rd):
            n = max(n, 1)
    elif p.kind == "mfma":
        big = p.passes + 4
        D = p.wr
        if c.kind == "mfma":
            if D & set(c.ab):
                n = max(n, big)
            cc = set(c.srcC)
            if D & cc:
                if not (cc == D and c.passes == p.passes):
                    n = max(n, p.passes + 2)
            elif D & c.wr:
                n = max(n, p.passes + 2)
        elif c.kind in ("valu", "ds", "vmem"):
            if D & (c.rd | c.wr):
                n = max(n, big)
            if c.kind == "valu" and (set(p.srcC) & c.wr):
                n = max(n, p.passes - 1)
    elif p.kind == "salu":
        if ("m", 0) in p.wr and c.lds_dma:
            n = max(n, 1)
    elif p.kind == "vmem":
        if p.stdata and (set(p.stdata) & c.wr):
            n = max(n, 2 if c.kind in ("valu", "mfma") else 1)
    return n


class Asm:
    def __init__(self):
        self.out = []
        self.hist = []
        self.vm = []
        self.lg = []
        self.smem = False
        self.nops = 0
        self.count = 0
        self.waits = 0

    def raw(self, text):
        self.out.append(text)

    def _push(self, ins):
        self.out.append(ins.text)
        self.hist.append(ins)
        if len(self.hist) > 24:
            self.hist.pop(0)
        self.count += 1

    def _wait(self, vm=None, lg=None):
        s = "s_waitcnt"
        if vm is not None:
            vm = min(vm, 63)
            s += " vmcnt(%d)" % vm
            if vm < len(self.vm):
                self.vm = self.vm[len(self.vm) - vm:] if vm else []
        if lg is not None:
            lg = min(lg, 15)
            s += " lgkmcnt(%d)" % lg
            if lg < len(self.lg):
                self.lg = self.lg[len(self.lg) - lg:] if lg else []
            if lg == 0:
                self.smem = False
        self.waits += 1
        self._push(Ins(s))

    def _needed(self, q, regs):
        for i in range(len(q) - 1, -1, -1):
            if q[i][0] & regs:
                return len(q) - 1 - i
        return None

    def wait_regs(self, regs):
        rs = set()
        for r in regs:
            rs |= set(regs_of(r))
        nv = self._needed(self.vm, rs)
        nl = self._needed(self.lg, rs)
        if nv is not None or nl is not None:
            self._wait(nv, nl)

    def wait_tag(self, tag):
        nv = nl = None
        for i in range(len(self.vm) - 1, -1, -1):
            if self.vm[i][1] == tag:
                nv = len(self.vm) - 1 - i
                break
        for i in range(len(self.lg) - 1, -1, -1):
            if self.lg[i][1] == tag:
                nl = len(self.lg) - 1 - i
                break
        if nv is not None or nl is not None:
            self._wait(nv, nl)

    def wait(self, vm=None, lg=None):
        self._wait(vm, lg)

    def I(self, text, tag=None):
        ins = Ins(text)
        touched = ins.rd | ins.wr
        if ins.kind not in ("ctl", "nop"):
            part = set()
            if ins.kind == "vmem" and "d16" in ins.op:
                part = ins.wr
            nv = self._needed(self.vm, touched - part)
            nl = self._needed(self.lg, touched)
            if self.smem and any(r in self.smem_regs for r in touched):
                nl = 0
            if nv is not None or nl is not None:
                self._wait(nv, nl)
        need = 0
        dist = 0
        for p in reversed(self.hist):
            n = need_states(p, ins)
            if n - dist > need:
                need = n - dist
            dist += p.states
            if dist >= 14:
                break
        while need > 0:
            k = min(need, 8)
            self._push(Ins("s_nop %d" % (k - 1)))
            self.nops += k
            need -= k
        self._push(ins)
        if ins.kind == "vmem":
            self.vm.append((set(ins.wr), tag))
            assert len(self.vm) <= 63, "too many vmem outstanding"
        elif ins.kind == "ds":
            self.lg.append((set(ins.wr), tag))
        elif ins.kind == "smem":
            if not self.smem:
                self.smem_regs = set()
            self.smem = True
            self.smem_regs |= ins.wr
        return ins

    def label(self, name, settle=True):
        if settle:
            self.settle()
        self.out.append(name + ":")

    def settle(self):
        need = 0
        dist = 0
        for p in reversed(self.hist):
            if p.kind == "mfma":
                need = max(need, p.passes + 4 - dist)
            elif p.kind == "valu":
                need = max(need, 5 - dist)
            elif p.kind in ("salu", "vmem"):
                need = max(need, 2 - dist)
            dist += p.states
            if dist >= 14:
                break
        while need > 0:
            k = min(need, 8)
            self._push(Ins("s_nop %d" % (k - 1)))
            need -= k

    def state(self):
        return (list(self.vm), list(self.lg))

    def set_state(self, st):
        self.vm = list(st[0])
        self.lg = list(st[1])
```

```python
import sys, math, struct
sys.path.insert(0, "gen")
from asmlib import Asm

NAME = "standalone__modern_conv_block_convnext_v2__vision"
OPT = dict(dbg="", stamps=False)
for a_ in sys.argv[2:]:
    k, v = a_.split("=")
    OPT[k] = v

def f32(x):
    return "0x%08x" % struct.unpack("<I", struct.pack("<f", x))[0]

K1 = 2.0 * math.log2(math.e) * math.sqrt(2.0 / math.pi)
K3 = K1 * 0.044715
SG = K3 ** (1.0 / 3.0)
CP = K1 / SG
HUGE = "0x40000000"
XBYTES = 224 * 224 * 192 * 2
W1F, W2F, BIAS, SUMS, CNT = 0, 294912, 589824, 590848, 615424
WSBYTES = 1 << 20
DUMP = 1 << 20
ROWB = 7168
YA, ETAB = 114688, 114688
BUF0, BUF1, STAB, PART, DUMMY = 36864, 94208, 151552, 154624, 155648

sX, sO, sWS, sD, sA, sB = "s[24:27]", "s[28:31]", "s[32:35]", "s[36:39]", "s[40:43]", "s[44:47]"
SPIN = 20000

A = Asm()
I = A.I

def vr(b, n=4):
    return "v[%d:%d]" % (b, b + n - 1)
def ar(b, n=4):
    return "a[%d:%d]" % (b, b + n - 1)

def srd(base, ptr, nbytes):
    I("s_mov_b32 s%d, s%d" % (base, ptr))
    I("s_and_b32 s%d, s%d, 0xffff" % (base + 1, ptr + 1))
    I("s_mov_b32 s%d, %s" % (base + 2, nbytes))
    I("s_mov_b32 s%d, 0x00020000" % (base + 3))

stamp_n = [0]
def stamp():
    if not OPT["stamps"]:
        return
    n = stamp_n[0]
    stamp_n[0] += 1
    I("s_memtime s[90:91]")
    A.wait(lg=0)
    I("v_writelane_b32 v14, s90, %d" % n)

def spin(label, voff_bytes, target, vtmp):
    I("v_readfirstlane_b32 s50, v%d" % vtmp)
    I("s_mov_b32 s51, %d" % SPIN)
    A.label(label + "_loop")
    I("s_cmp_ge_u32 s50, %d" % target)
    I("s_cbranch_scc1 %s_done" % label)
    I("buffer_load_dword v%d, off, %s, 0 offset:%d sc1" % (vtmp, sD, voff_bytes))
    A.wait(vm=0)
    I("v_readfirstlane_b32 s50, v%d" % vtmp)
    I("s_sub_u32 s51, s51, 1")
    I("s_cmp_lg_u32 s51, 0")
    I("s_cbranch_scc1 %s_loop" % label)
    A.label(label + "_done")

def prologue():
    I("s_cmp_ge_u32 s2, 256")
    I("s_cbranch_scc1 L_exit")
    I("s_load_dwordx16 s[4:19], s[0:1], 0")
    I("s_load_dwordx2 s[20:21], s[0:1], 64")
    I("v_mov_b32 v15, v0")
    I("v_lshrrev_b32 v1, 6, v0")
    I("v_and_b32 v0, 63, v0")
    I("v_readfirstlane_b32 s3, v1")
    I("v_lshlrev_b32 v1, 4, v0")
    I("s_cmp_ge_u32 s2, 32")
    I("s_cbranch_scc1 L_main")

def helpers():
    I("v_and_b32 v2, 31, v0")
    I("v_lshrrev_b32 v3, 5, v0")
    A.wait(lg=0)
    srd(32, 20, WSBYTES)
    srd(36, 18, 256)
    I("s_cmp_ge_u32 s2, 6")
    I("s_cbranch_scc1 L_hw1")
    srd(40, 10, 768 * 192 * 2)
    srd(44, 14, 768 * 2)
    I("v_mul_u32_u24 v4, 1536, v3")
    I("v_lshl_add_u32 v4, v2, 1, v4")
    I("s_lshl_b32 s50, s2, 6")
    I("v_add_u32 v4, s50, v4")
    I("v_add_u32 v5, 3072, v4")
    I("v_lshlrev_b32 v6, 3, v3")
    I("s_mul_i32 s52, s3, 12")
    I("s_mul_i32 s53, s2, 48")
    for n in range(12):
        I("s_add_u32 s54, s52, %d" % n)
        I("s_lshr_b32 s55, s54, 3")
        I("s_bfe_u32 s56, s54, 0x20001")
        I("s_mul_i32 s56, s56, 6")
        I("s_add_u32 s55, s55, s56")
        I("s_lshl_b32 s55, s55, 1")
        I("s_and_b32 s56, s54, 1")
        I("s_add_u32 s55, s55, s56")
        I("s_mul_i32 s%d, s55, %d" % (60 + n, 16 * 384))
        I("s_lshl_b32 s%d, s55, 5" % (72 + n))
        for j in range(8):
            I("buffer_load_ushort v%d, v%d, %s, s%d offen offset:%d" % (144 + 8 * (n & 3) + j, 4 + (j >> 2), sA, 60 + n, (j & 3) * 384))
        bb = 96 + 4 * n
        I("buffer_load_dwordx2 %s, v6, %s, s%d offen" % (vr(bb, 2), sB, 72 + n))
        I("buffer_load_dwordx2 %s, v6, %s, s%d offen offset:16" % (vr(bb + 2, 2), sB, 72 + n))
        if n % 4 == 3:
            for m in range(n - 3, n + 1):
                b = 32 + 4 * m
                for j in range(4):
                    I("v_lshl_or_b32 v%d, v%d, 16, v%d" % (b + j, 144 + 8 * (m & 3) + 2 * j + 1, 144 + 8 * (m & 3) + 2 * j))
                I("s_add_u32 s54, s52, s53")
                I("s_add_u32 s54, s54, %d" % m)
                I("s_lshl_b32 s54, s54, 10")
                I("s_add_u32 s54, s54, %d" % W2F)
                I("buffer_store_dwordx4 %s, v1, %s, s54 offen sc1" % (vr(b), sWS))
                I("v_mfma_f32_32x32x16_bf16 v[16:31], %s, %s, %s" % (vr(b), vr(96 + 4 * m), "0" if m == 0 else "v[16:31]"))
    I("v_lshlrev_b32 v7, 4, v3")
    I("s_lshl_b32 s54, s3, 7")
    I("v_add_u32 v7, s54, v7")
    for g in range(4):
        I("ds_write_b128 v7, %s offset:%d" % (vr(16 + 4 * g), 32 * g))
    A.wait(lg=0)
    I("s_barrier")
    I("v_lshlrev_b32 v7, 2, v2")
    for w in range(4):
        I("ds_read_b32 v%d, v7 offset:%d" % (8 + w, 128 * w))
    I("v_add_f32 v8, v8, v9")
    I("v_add_f32 v10, v10, v11")
    I("v_add_f32 v8, v8, v10")
    I("s_lshl_b32 s54, s2, 7")
    I("s_add_u32 s54, s54, %d" % BIAS)
    I("buffer_store_dword v8, v7, %s, s54 offen sc1" % sWS)
    I("s_movk_i32 s55, 128")
    I("s_branch L_hfin")
    A.label("L_hw1")
    A.vm = []; A.lg = []
    srd(40, 8, 192 * 768 * 2)
    I("v_mul_u32_u24 v4, %d, v3" % (4 * 1536))
    I("v_lshl_add_u32 v4, v2, 1, v4")
    I("v_add_u32 v5, %d, v4" % (2 * 1536))
    I("v_add_u32 v6, %d, v4" % (16 * 1536))
    I("v_add_u32 v7, %d, v4" % (18 * 1536))
    I("s_sub_u32 s52, s2, 6")
    I("s_lshl_b32 s53, s52, 2")
    I("s_add_u32 s53, s53, s3")
    for n in range(3):
        I("s_add_u32 s54, s53, %d" % (104 * n))
        I("s_min_u32 s54, s54, 287")
        I("s_mul_i32 s55, s54, 5462")
        I("s_lshr_b32 s55, s55, 16")
        I("s_mul_i32 s56, s55, 12")
        I("s_sub_u32 s56, s54, s56")
        I("s_lshr_b32 s57, s56, 1")
        I("s_lshl_b32 s57, s57, 2")
        I("s_and_b32 s56, s56, 1")
        I("s_add_u32 s57, s57, s56")
        I("s_mul_i32 s57, s57, %d" % (8 * 1536))
        I("s_lshl_b32 s55, s55, 6")
        I("s_add_u32 s%d, s57, s55" % (60 + n))
        I("s_lshl_b32 s%d, s54, 10" % (64 + n))
        for j in range(8):
            vo = 4 + 2 * (j >> 2) + ((j & 3) >> 1)
            I("buffer_load_ushort v%d, v%d, %s, s%d offen offset:%d" % (144 + 8 * n + j, vo, sA, 60 + n, (j & 1) * 1536))
    for r in range(4):
        I("v_mov_b32 v%d, 0" % (16 + r))
    I("s_lshl_b32 s54, s52, 10")
    I("s_add_u32 s54, s54, %d" % SUMS)
    I("buffer_store_dwordx4 v[16:19], v1, %s, s54 offen sc1" % sWS)
    for n in range(3):
        for j in range(4):
            I("v_lshl_or_b32 v%d, v%d, 16, v%d" % (32 + 4 * n + j, 144 + 8 * n + 2 * j + 1, 144 + 8 * n + 2 * j))
        I("buffer_store_dwordx4 %s, v1, %s, s%d offen sc1" % (vr(32 + 4 * n), sWS, 64 + n))
    I("s_mov_b32 s55, 0")
    A.label("L_hfin")
    A.wait(vm=0, lg=0)
    I("s_barrier")
    I("s_cmp_lg_u32 s3, 0")
    I("s_cbranch_scc1 L_exit")
    I("s_mov_b64 exec, 1")
    I("v_mov_b32 v8, 1")
    I("buffer_atomic_add v8, off, %s, s55 sc1" % sD)
    A.wait(vm=0)
    A.label("L_exit", settle=False)
    I("s_endpgm")

PAIR_TAP = {(0, 0): (0, 0), (1, 0): (0, 1), (0, 1): (1, 0), (1, 1): (1, 1), (0, 2): (2, 0), (1, 2): (2, 1),
            (2, 0): (3, 0), (2, 1): (3, 1), (2, 2): (4, 1)}

def phase0():
    A.label("L_main")
    A.vm = []; A.lg = []
    A.smem = True
    if OPT["stamps"]:
        I("v_mov_b32 v14, 0")
        stamp()
    I("s_sub_u32 s50, s2, 32")
    I("s_lshr_b32 s50, s50, 3")
    I("s_and_b32 s51, s2, 7")
    I("s_lshl_b32 s51, s51, 1")
    I("s_cmp_ge_u32 s50, 14")
    I("s_cselect_b32 s52, 1, 0")
    I("s_cselect_b32 s53, 14, 0")
    I("s_add_u32 s51, s51, s52")
    I("s_sub_u32 s50, s50, s53")
    I("s_mul_i32 s48, s51, 14")
    I("s_lshl_b32 s49, s50, 4")
    I("s_sub_u32 s50, s49, 1")
    I("s_mov_b32 s51, -24")
    for r in range(4):
        I("v_mov_b32 v%d, 0" % (40 + r))
    I("v_lshlrev_b32 v2, 4, v15")
    I("v_add_u32 v2, %d, v2" % ETAB)
    for i in range(8):
        I("ds_write_b128 v2, v[40:43] offset:%d" % (4096 * i))
    I("v_mov_b32 v44, %s" % HUGE)
    for i in range(7):
        I("v_add_u32 v3, %d, v0" % (64 * i) if i else "v_mov_b32 v3, v0")
        I("v_mul_u32_u24 v4, 2731, v3")
        I("v_lshrrev_b32 v4, 16, v4")
        I("v_mad_i32_i24 v3, v4, s51, v3")
        I("v_bfe_u32 v5, v4, 1, 3")
        I("v_xor_b32 v3, v3, v5")
        I("v_add_u32 v4, s50, v4")
        I("v_cmp_gt_u32 vcc, 224, v4")
        I("v_mul_u32_u24 v4, 384, v4")
        I("v_lshl_add_u32 v4, v3, 4, v4")
        I("v_cndmask_b32 v%d, %s, v4, vcc" % (32 + i, "v44"))
        if i == 0:
            pass
    I("v_min_u32 v6, 191, v15")
    I("v_lshlrev_b32 v7, 1, v6")
    A.wait(lg=0)
    srd(24, 4, XBYTES)
    srd(40, 6, 9 * 192 * 2)
    for t in range(9):
        I("buffer_load_ushort v%d, v7, %s, 0 offen offset:%d" % (48 + t, sA, t * 384), tag="dw")
    I("s_mul_i32 s52, s3, %d" % ROWB)
    I("s_add_u32 s53, s48, s3")
    I("s_sub_u32 s53, s53, 1")
    for k in range(4):
        I("s_mul_i32 s54, s53, %d" % (224 * 384))
        I("s_cmp_lt_u32 s53, 224")
        I("s_cselect_b32 s54, s54, %s" % HUGE)
        for i in range(7):
            I("s_add_u32 m0, s52, %d" % (k * 4 * ROWB + i * 1024))
            I("buffer_load_dwordx4 v%d, %s, s54 offen lds" % (32 + i, sX), tag="row%d" % k)
        if k < 3:
            I("s_add_u32 s53, s53, 4")
    srd(28, 16, XBYTES)
    srd(32, 20, WSBYTES if not (OPT["dbg"] or OPT["stamps"]) else 0x8000000)
    srd(36, 18, 256)
    srd(44, 12, 768 * 2)
    I("v_lshrrev_b32 v8, 4, v6")
    I("v_mul_u32_u24 v8, 528, v8")
    I("v_and_b32 v9, 15, v6")
    I("v_lshl_add_u32 v8, v9, 4, v8")
    I("v_and_b32 v9, 7, v6")
    I("v_lshl_add_u32 v8, v9, 1, v8")
    I("v_add_u32 v8, %d, v8" % ETAB)
    I("v_and_b32 v10, 15, v0")
    I("v_lshrrev_b32 v11, 4, v0")
    I("v_and_b32 v12, 1, v11")
    I("v_lshrrev_b32 v13, 1, v11")
    I("v_lshlrev_b32 v9, 8, v12")
    I("v_lshl_add_u32 v9, v10, 4, v9")
    I("v_lshrrev_b32 v2, 3, v10")
    I("v_cmp_eq_u32 vcc, v2, v13")
    I("v_mov_b32 v2, 512")
    I("v_cndmask_b32 v9, v2, v9, vcc")
    I("v_add_u32 v9, %d, v9" % ETAB)
    I("s_sub_u32 s52, s3, 2")
    I("s_mul_i32 s52, s52, %d" % ROWB)
    for g in range(4):
        if g < 3:
            I("v_add_u32 v2, %d, v10" % g if g else "v_mov_b32 v2, v10")
            I("v_mul_u32_u24 v3, %d, v12" % ROWB)
        else:
            I("v_add_u32 v2, v10, v12")
            I("v_mov_b32 v3, %d" % (2 * ROWB))
        I("v_add_u32 v3, s52, v3")
        I("v_mul_u32_u24 v4, 384, v2")
        I("v_add_u32 v3, v3, v4")
        I("v_bfe_u32 v4, v2, 1, 3")
        I("v_xor_b32 v4, v4, v13")
        I("v_lshl_add_u32 v%d, v4, 4, v3" % (16 + 4 * g))
        for v in range(1, 4):
            I("v_xor_b32 v%d, %d, v%d" % (16 + 4 * g + v, 32 * v, 16 + 4 * g))
    I("v_lshlrev_b32 v7, 10, v13")
    I("v_lshl_add_u32 v7, v12, 9, v7")
    I("v_lshl_add_u32 v7, v10, 4, v7")
    I("s_and_b32 s52, s3, 1")
    I("s_lshl_b32 s52, s52, 8")
    I("v_add_u32 v7, s52, v7")
    I("v_add_u32 v2, 4096, v1")
    I("v_add_u32 v3, 8192, v1")
    I("v_add_u32 v4, %d, v1" % YA)
    I("s_mul_i32 s52, s3, 14336")
    I("s_add_u32 s52, s52, %d" % BUF0)
    I("v_add_u32 v5, s52, v1")
    I("v_add_u32 v6, %d, v5" % (BUF1 - BUF0))
    I("s_mul_i32 s52, s3, %d" % (6 * 12288))
    for r in range(1, 6):
        I("s_add_u32 s%d, s52, %d" % (52 + r, r * 12288))
    I("s_mov_b32 s68, %s" % f32(CP)); I("s_mov_b32 s69, %s" % f32(CP))
    I("s_mov_b32 s70, 1.0"); I("s_mov_b32 s71, 1.0")
    I("s_mov_b32 s72, 0xaaaaaaaa"); I("s_mov_b32 s73, 0xaaaaaaaa")
    I("s_barrier")
    A.wait_tag("dw")
    for dy in range(3):
        for dx in range(3):
            p, m = PAIR_TAP[(dy, dx)]
            I("ds_write_b16 v8, v%d offset:%d" % (48 + 3 * dy + dx, p * 12 * 528 + m * 256))
    A.wait(lg=0)
    I("s_barrier")
    for p in range(5):
        for cb in range(12):
            f = p * 12 + cb
            I("ds_read_b128 %s, v9 offset:%d" % (ar(4 * f), f * 528))
    A.wait(lg=0)
    stamp()
    for k in range(4):
        A.wait_tag("row%d" % k)
        I("s_barrier")
        stamp()
        if k == 2:
            I("buffer_load_dword v13, off, %s, 0 sc1" % sD)
        if k == 3:
            for ks in range(12):
                I("buffer_load_dwordx4 %s, v%d, %s, s52 offen offset:%d sc1" % (vr(208 + 4 * ks), 1 + (ks >> 2), sWS, (ks & 3) * 1024))
        if k == 0:
            I("s_cmp_lt_u32 s3, 2")
            I("s_cbranch_scc1 L_skip0")
        conv_step(k)
        if k == 0:
            A.wait(lg=0)
            A.label("L_skip0")
            for r in range(16):
                I("v_add_u32 v%d, %d, v%d" % (16 + r, 4 * ROWB, 16 + r))
        if k == 2:
            A.wait(vm=0)
            spin("L_c1", 0, 26, 13)
            A.vm = []
    A.wait(lg=0)
    I("s_barrier")
    stamp()

def conv_step(k):
    ACC, RING, NR = 80, 32, 12
    koff = 0 if k == 0 else (k - 1) * 4 * ROWB
    items = [(p, cb) for p in range(5) for cb in range(12)]
    def rd(n):
        p, cb = items[n]
        g = p if p < 4 else 2
        off = koff + (cb >> 2) * 128 + (ROWB if p == 4 else 0)
        I("ds_read_b128 %s, v%d offset:%d" % (vr(RING + 4 * (n % NR)), 16 + 4 * g + (cb & 3), off))
    for n in range(NR):
        rd(n)
    t0 = 2 * k - 1
    def ybase(t):
        return YA + 12288 * t if t < 4 else 12288 * (t - 4)
    I("s_cmp_ge_u32 s3, 2")
    I("s_cselect_b32 s50, %d, %d" % (ybase(t0 + 1), 0) if False else "s_mov_b32 s50, %d" % ybase(max(t0, 0)))
    I("s_mov_b32 s51, %d" % ybase(t0 + 1))
    I("s_cselect_b32 s50, s51, s50")
    I("v_add_u32 v12, s50, v7")
    for n in range(60):
        p, cb = items[n]
        if n % 4 == 0:
            A.wait_regs([vr(RING + 4 * ((n + 3) % NR))])
        acc = vr(ACC + 4 * cb)
        I("v_mfma_f32_16x16x32_bf16 %s, %s, %s, %s" % (acc, ar(4 * n), vr(RING + 4 * (n % NR)), "0" if p == 0 else acc))
        if n + NR < 60:
            rd(n + NR)
    T = 128
    I("v_pk_add_f32 %s, %s, %s" % (vr(T, 2), vr(ACC, 2), vr(ACC + 2, 2)))
    I("v_pk_add_f32 %s, %s, %s" % (vr(T + 2, 2), vr(ACC + 4, 2), vr(ACC + 6, 2)))
    for i in range(4, 24):
        d = T + 2 * (i & 1)
        I("v_pk_add_f32 %s, %s, %s" % (vr(d, 2), vr(d, 2), vr(ACC + 2 * i, 2)))
    I("v_pk_add_f32 %s, %s, %s" % (vr(T, 2), vr(T, 2), vr(T + 2, 2)))
    I("v_add_f32 v%d, v%d, v%d" % (T, T, T + 1))
    def xreduce(r):
        I("v_mov_b32 v%d, v%d" % (r + 1, r))
        I("v_permlane32_swap_b32 v%d, v%d" % (r, r + 1))
        I("v_add_f32 v%d, v%d, v%d" % (r, r, r + 1))
        I("v_mov_b32 v%d, v%d" % (r + 1, r))
        I("v_permlane16_swap_b32 v%d, v%d" % (r, r + 1))
        I("v_add_f32 v%d, v%d, v%d" % (r, r, r + 1))
    xreduce(T)
    I("v_mul_f32 v%d, %s, v%d" % (T, f32(-1.0 / 192), T))
    for i in range(24):
        I("v_pk_add_f32 %s, %s, %s op_sel_hi:[1,0]" % (vr(ACC + 2 * i, 2), vr(ACC + 2 * i, 2), vr(T, 2)))
    I("v_pk_mul_f32 %s, %s, %s" % (vr(T + 2, 2), vr(ACC, 2), vr(ACC, 2)))
    I("v_pk_mul_f32 %s, %s, %s" % (vr(T + 4, 2), vr(ACC + 2, 2), vr(ACC + 2, 2)))
    for i in range(2, 24):
        d = T + 2 + 2 * (i & 1)
        I("v_pk_fma_f32 %s, %s, %s, %s" % (vr(d, 2), vr(ACC + 2 * i, 2), vr(ACC + 2 * i, 2), vr(d, 2)))
    I("v_pk_add_f32 %s, %s, %s" % (vr(T + 2, 2), vr(T + 2, 2), vr(T + 4, 2)))
    I("v_add_f32 v%d, v%d, v%d" % (T + 2, T + 2, T + 3))
    xreduce(T + 2)
    I("v_mov_b32 v%d, %s" % (T + 3, f32(1e-5 / SG ** 2)))
    I("v_fmac_f32 v%d, %s, v%d" % (T + 3, f32(1.0 / (192 * SG ** 2)), T + 2))
    I("v_rsq_f32 v%d, v%d" % (T + 2, T + 3))
    for m in range(6):
        for i in range(4):
            r = ACC + 8 * m + 2 * i
            I("v_pk_mul_f32 %s, %s, %s op_sel_hi:[1,0]" % (vr(r, 2), vr(r, 2), vr(T + 2, 2)))
        for i in range(4):
            r = ACC + 8 * m + 2 * i
            I("v_cvt_pk_bf16_f32 v%d, v%d, v%d" % (144 + 4 * m + i, r, r + 1))
        I("ds_write_b128 v12, %s offset:%d" % (vr(144 + 4 * m), 2048 * m))

SQ = 16
XB = (32, 48)
TB = (64, 80)
BR = 96
def a_reg(r, ks):
    if r == 0:
        return vr(208 + 4 * ks)
    return ar((48 if r & 1 else 0) + 4 * ks)

def h_loc(u):
    if u < 7:
        return ("lds", u)
    if u < 27:
        return ("v", 96 + 8 * (u - 7))
    if u < 41:
        return ("a", 144 + 8 * (u - 27))
    return ("t", 0)

def b_read(u, ks):
    t = u % 7
    if t < 4:
        return "ds_read_b128 %s, v4 offset:%d" % (ar(BR + 4 * ks), t * 12288 + ks * 1024)
    return "ds_read_b128 %s, v1 offset:%d" % (ar(BR + 4 * ks), (t - 4) * 12288 + ks * 1024)

def mfma1(u, ks):
    X = vr(XB[u & 1], 16)
    return "v_mfma_f32_32x32x16_bf16 %s, %s, %s, %s" % (X, a_reg(u // 7, ks), ar(BR + 4 * ks), "0" if ks == 0 else X)

def store_ops(u):
    T = TB[u & 1]
    kind, b = h_loc(u)
    halves = []
    for hf in range(2):
        L = []
        for i in range(4 * hf, 4 * hf + 4):
            dst = b + i if kind == "v" else T + i
            L.append("v_cvt_pk_bf16_f32 v%d, v%d, v%d" % (dst, T + 2 * i, T + 2 * i + 1))
        if kind == "a":
            for i in range(4 * hf, 4 * hf + 4):
                L.append("v_accvgpr_write_b32 a%d, v%d" % (b + i, T + i))
        if kind == "lds":
            L.append("ds_write_b128 v5, %s offset:%d" % (vr(T + 4 * hf), b * 2048 + hf * 1024))
        halves.append(L)
    return halves

def reduce_ops(r):
    L = []
    for i in range(8):
        L.append("v_permlane16_swap_b32 v%d, v%d" % (SQ + i, SQ + i + 8))
    for i in range(8):
        L.append("v_add_f32 v%d, v%d, v%d" % (SQ + i, SQ + i, SQ + i + 8))
    for i in range(4):
        L.append("v_add_f32_dpp v%d, v%d, v%d row_ror:8 row_mask:0xf bank_mask:0x3" % (SQ + i, SQ + i, SQ + i))
    for i in range(4):
        L.append("v_add_f32_dpp v%d, v%d, v%d row_ror:8 row_mask:0xf bank_mask:0xc" % (SQ + i, SQ + i + 4, SQ + i + 4))
    for i in range(2):
        L.append("v_add_f32_dpp v%d, v%d, v%d row_shl:4 row_mask:0xf bank_mask:0x5" % (SQ + i, SQ + i, SQ + i))
    for i in range(2):
        L.append("v_add_f32_dpp v%d, v%d, v%d row_shr:4 row_mask:0xf bank_mask:0xa" % (SQ + i, SQ + i + 2, SQ + i + 2))
    for i in range(2):
        L.append("v_add_f32_dpp v%d, v%d, v%d quad_perm:[1,0,3,2] row_mask:0xf bank_mask:0xf" % (SQ + i, SQ + i, SQ + i))
    L.append("v_cndmask_b32_e64 v%d, v%d, v%d, s[72:73]" % (SQ, SQ, SQ + 1))
    L.append("v_add_f32_dpp v13, v%d, v%d quad_perm:[2,3,0,1] row_mask:0xf bank_mask:0xf" % (SQ, SQ))
    L.append("buffer_atomic_add_f32 v13, v7, %s, s66 offen offset:%d sc1" % (sWS, 128 * r))
    return L

def pw_ops(u):
    X, T = XB[u & 1], TB[u & 1]
    for i in range(8):
        I("v_pk_fma_f32 %s, %s, %s, s[68:69]" % (vr(T + 2 * i, 2), vr(X + 2 * i, 2), vr(X + 2 * i, 2)))
    for i in range(8):
        I("v_pk_mul_f32 %s, %s, %s neg_lo:[1,0] neg_hi:[1,0]" % (vr(T + 2 * i, 2), vr(X + 2 * i, 2), vr(T + 2 * i, 2)))

def stretch(u, half, trans, extras):
    T = TB[u & 1]
    tr = ["%s v%d, v%d" % (trans, T + i, T + i) for i in range(16)]
    ntr = [2, 2, 2, 2, 3, 5]
    has = u + 1 < 42
    ex = list(extras)
    per = [0] * 6
    for n in range(len(ex)):
        if n < 4:
            per[n] += 1
        else:
            per[(n - 4) % 6] += 1
    if has:
        A.wait_regs([ar(BR + 4 * (6 * half + 5)), a_reg((u + 1) // 7, 6 * half + 5)])
    for g in range(6):
        ks = 6 * half + g
        if has:
            I(mfma1(u + 1, ks))
            if u + 2 < 42:
                I(b_read(u + 2, ks))
        for _ in range(ntr[g]):
            I(tr.pop(0))
        for _ in range(per[g]):
            I(ex.pop(0))

def phase1():
    for ks in range(12):
        I(b_read(0, ks))
    I("v_and_b32 v8, 24, v0")
    I("v_lshrrev_b32 v9, 3, v0")
    I("v_and_b32 v9, 4, v9")
    I("v_or_b32 v8, v8, v9")
    I("v_lshrrev_b32 v9, 1, v0")
    I("v_and_b32 v9, 2, v9")
    I("v_or_b32 v8, v8, v9")
    I("v_and_b32 v9, 1, v0")
    I("v_or_b32 v8, v8, v9")
    I("v_lshlrev_b32 v8, 2, v8")
    I("v_and_b32 v9, 2, v0")
    I("v_lshlrev_b32 v9, 29, v9")
    I("v_or_b32 v7, v8, v9")
    I("s_and_b32 s66, s2, 7")
    I("s_mul_i32 s66, s66, 3072")
    I("s_mul_i32 s50, s3, 768")
    I("s_add_u32 s66, s66, s50")
    I("s_add_u32 s66, s66, %d" % SUMS)
    for ks in range(12):
        I(mfma1(0, ks))
        I(b_read(1, ks))
    pw_ops(0)
    for u in range(42):
        r, t = divmod(u, 7)
        X, T = XB[u & 1], TB[u & 1]
        ex = [[], []]
        if u > 0:
            ex = store_ops(u - 1)
        if t == 0 and r > 0:
            red = reduce_ops(r - 1)
            ex[0] = ex[0] + red[:16]
            ex[1] = ex[1] + red[16:]
        for rr in range(1, 6):
            first = 0 if rr == 1 else 7 * (rr - 1) - 1
            if first <= u < first + 4:
                for ks in range(3 * (u - first), 3 * (u - first) + 3):
                    ex[1].append("buffer_load_dwordx4 %s, v%d, %s, s%d offen offset:%d sc1" %
                                 (a_reg(rr, ks), 1 + (ks >> 2), sWS, 52 + rr, (ks & 3) * 1024))
        if u == 36:
            ex[1].append("buffer_load_dword v12, off, %s, 0 offset:128 sc1" % sD)
        stretch(u, 0, "v_exp_f32", ex[0])
        for i in range(8):
            I("v_pk_add_f32 %s, %s, s[70:71]" % (vr(T + 2 * i, 2), vr(T + 2 * i, 2)))
        stretch(u, 1, "v_rcp_f32", ex[1])
        for i in range(8):
            I("v_pk_mul_f32 %s, %s, %s" % (vr(T + 2 * i, 2), vr(X + 2 * i, 2), vr(T + 2 * i, 2)))
        for i in range(8):
            if t == 0:
                I("v_pk_mul_f32 %s, %s, %s" % (vr(SQ + 2 * i, 2), vr(T + 2 * i, 2), vr(T + 2 * i, 2)))
            else:
                I("v_pk_fma_f32 %s, %s, %s, %s" % (vr(SQ + 2 * i, 2), vr(T + 2 * i, 2), vr(T + 2 * i, 2), vr(SQ + 2 * i, 2)))
        if u + 1 < 42:
            pw_ops(u + 1)
        if t == 6:
            stamp()
    for s in reduce_ops(5):
        I(s)
    for hf in store_ops(41):
        for s in hf:
            I(s)

ACC2 = 80
def h_loc2(u):
    if u < 27:
        return 36 + 8 * (u - 14)
    if u < 41:
        return 144 + 8 * (u - 27)
    return 28

ITEMS = [(0, p) for p in range(7)] + [(1, p) for p in range(4)]
def acc_of(ab, p):
    return ACC2 + 16 * (p if ab == 0 else 7 + p)
def tile_s(ab, p):
    return "s65" if (ab == 1 and p == 3) else "s%d" % (58 + p)

AF = (16, 24)
RAW = (32, 40, 48)
SB = (56, 64)
TMP = 72

def kinfo(k):
    rho, w2, s = k >> 3, (k & 7) >> 1, k & 1
    return rho, w2, s

def b2_read(k, p):
    rho, w2, s = kinfo(k)
    reg = (2 if p < 3 else 3) if rho % 2 == 0 else (4 if p < 3 else 7)
    return "ds_read_b128 %s, v%d offset:%d" % (ar(4 * p), reg, (7 * w2 + p) * 2048 + s * 1024)

def s_reads(k):
    rho, w2, s = kinfo(k)
    off = (32 * (6 * w2 + rho) + 16 * s) * 4
    b = SB[k & 1]
    return ["ds_read_b128 %s, v8 offset:%d" % (vr(b), off), "ds_read_b128 %s, v8 offset:%d" % (vr(b + 4), off + 16)]

def raw_loads(k):
    L = []
    if k % 4 == 0 and k > 0:
        L.append("s_add_u32 s67, s67, 4096")
    for ab in range(2):
        L.append("buffer_load_dwordx4 %s, v%d, %s, s67 offen offset:%d sc1" % (vr(RAW[k % 3] + 4 * ab), 9 + ab, sWS, (k & 3) * 1024))
    return L

def scale_ops(k):
    L = []
    S = SB[k & 1]
    for ab in range(2):
        R = RAW[k % 3] + 4 * ab
        D = AF[k & 1] + 4 * ab
        t = TMP + 4 * ab
        for i in range(4):
            L.append("v_lshlrev_b32 v%d, 16, v%d" % (t + i, R + i))
        for i in range(4):
            L.append("v_and_b32 v%d, 0xffff0000, v%d" % (R + i, R + i))
        for i in range(4):
            L.append("v_mul_f32 v%d, v%d, v%d" % (t + i, S + 2 * i, t + i))
            L.append("v_mul_f32 v%d, v%d, v%d" % (R + i, S + 2 * i + 1, R + i))
        for i in range(4):
            L.append("v_cvt_pk_bf16_f32 v%d, v%d, v%d" % (D + i, t + i, R + i))
    return L

def barrier_phase():
    A.wait(vm=0, lg=0)
    spin("L_c2", 128, 6, 12)
    A.vm = []
    I("s_barrier")
    stamp()
    I("s_cmp_lg_u32 s3, 0")
    I("s_cbranch_scc1 L_noarr")
    I("s_and_b32 s50, s2, 15")
    I("s_lshl_b32 s50, s50, 7")
    I("s_add_u32 s50, s50, %d" % CNT)
    I("s_mov_b64 exec, 1")
    I("v_mov_b32 v13, 1")
    I("buffer_atomic_add v13, off, %s, s50 sc1" % sWS)
    I("s_mov_b64 exec, -1")
    A.label("L_noarr")
    I("s_and_b32 s50, s3, 1")
    I("s_lshr_b32 s51, s3, 1")
    I("s_mul_i32 s74, s51, 3")
    I("s_lshl_b32 s75, s50, 1")
    I("s_add_u32 s75, s75, s74")
    I("s_add_u32 s74, s74, 1")
    I("s_mul_i32 s76, s48, 224")
    I("s_add_u32 s76, s76, s49")
    I("s_mul_i32 s76, s76, 384")
    I("s_cmp_lg_u32 s50, 0")
    for p in range(7):
        I("s_mov_b32 s77, %d" % (p * 172032))
        I("s_cselect_b32 s77, %d, s77" % (((p + 4) % 7) * 172032))
        I("s_add_u32 s%d, s76, s77" % (58 + p))
        I("s_cmp_lg_u32 s50, 0")
    I("s_cselect_b32 s65, %s, s61" % HUGE)
    I("v_and_b32 v11, 15, v0")
    I("v_bfe_u32 v12, v0, 4, 1")
    I("v_mul_u32_u24 v12, 224, v12")
    I("v_add_u32 v11, v11, v12")
    I("v_mul_u32_u24 v11, 384, v11")
    I("v_lshrrev_b32 v13, 5, v0")
    I("v_lshl_add_u32 v11, v13, 4, v11")
    I("s_lshl_b32 s77, s74, 6")
    I("v_add_u32 v12, s77, v11")
    I("s_lshl_b32 s77, s75, 6")
    I("v_add_u32 v11, s77, v11")
    def xload(n):
        ab, p = ITEMS[n]
        acc = acc_of(ab, p)
        for g in range(2):
            I("buffer_load_dwordx4 %s, v%d, %s, %s offen offset:%d" % (vr(acc + 8 + 4 * g), 11 + ab, sX, tile_s(ab, p), 32 * g))
    for i in range(8):
        I("v_accvgpr_write_b32 a%d, v%d" % (28 + i, TB[1] + i))
    xload(0)
    for t in range(7):
        for s in range(2):
            I("ds_write_b128 v6, %s offset:%d" % (vr(96 + 8 * t + 4 * s), t * 2048 + s * 1024))
    xload(1); xload(2); xload(3)
    nxt = 4
    for u in range(14, 27):
        for i in range(8):
            I("v_accvgpr_write_b32 a%d, v%d" % (h_loc2(u) + i, 96 + 8 * (u - 7) + i))
        top = 96 + 8 * (u - 7) + 8
        while nxt < 11 and ACC2 + 16 * nxt + 16 <= top:
            xload(nxt); nxt += 1
    assert nxt == 11
    I("v_lshlrev_b32 v8, 4, v13")
    I("s_lshl_b32 s77, s75, 7")
    I("s_add_u32 s77, s77, %d" % BIAS)
    I("s_lshl_b32 s78, s74, 7")
    I("s_add_u32 s78, s78, %d" % BIAS)
    for g in range(4):
        I("buffer_load_dwordx4 %s, v8, %s, s77 offen offset:%d sc1" % (vr(16 + 4 * g), sWS, 32 * g))
    for g in range(4):
        I("buffer_load_dwordx4 %s, v8, %s, s78 offen offset:%d sc1" % (vr(56 + 4 * g), sWS, 32 * g))
    I("s_mul_i32 s77, s75, 49152")
    I("v_add_u32 v9, s77, v1")
    I("s_mul_i32 s77, s74, 49152")
    I("v_add_u32 v10, s77, v1")
    I("s_mov_b32 s67, %d" % W2F)
    for k in range(3):
        for s in raw_loads(k):
            I(s)
    I("s_mul_i32 s77, s3, 192")
    I("v_lshl_add_u32 v74, v0, 2, s77")
    I("v_cmp_gt_u32 vcc, 48, v0")
    I("v_lshlrev_b32 v75, 1, v74")
    I("v_cndmask_b32 v75, v44, v75, vcc" if False else "v_mov_b32 v76, %s" % HUGE)
    I("v_cndmask_b32 v75, v76, v75, vcc")
    I("buffer_load_dwordx2 v[72:73], v75, %s, 0 offen" % sB)
    I("v_lshlrev_b32 v75, 2, v74")
    I("v_cndmask_b32 v75, v76, v75, vcc")
    I("v_and_b32 v76, 0xfffffff3, v74")
    I("v_and_b32 v77, 4, v74")
    I("v_lshl_or_b32 v76, v77, 1, v76")
    I("v_and_b32 v77, 8, v74")
    I("v_lshrrev_b32 v77, 1, v77")
    I("v_or_b32 v76, v76, v77")
    I("v_lshlrev_b32 v76, 2, v76")
    I("v_add_u32 v76, %d, v76" % STAB)
    I("v_mov_b32 v77, %d" % DUMMY)
    I("v_cndmask_b32 v76, v77, v76, vcc")
    I("s_mov_b64 s[80:81], vcc")
    I("s_mul_i32 s77, s50, 8192")
    I("s_add_u32 s77, s77, %d" % BUF0)
    I("v_add_u32 v2, s77, v1")
    I("v_add_u32 v4, %d, v2" % (BUF1 - BUF0))
    I("s_mul_i32 s77, s50, -6144")
    I("s_add_u32 s77, s77, %d" % BUF0)
    I("v_add_u32 v3, s77, v1")
    I("v_add_u32 v7, %d, v3" % (BUF1 - BUF0))
    I("v_lshlrev_b32 v8, 5, v13")
    I("v_add_u32 v8, %d, v8" % STAB)
    for p in range(7):
        I(b2_read(0, p))
    for n, (ab, p) in enumerate(ITEMS):
        acc = acc_of(ab, p)
        bb = 16 if ab == 0 else 56
        for g in range(2):
            I("v_permlane32_swap_b32 v%d, v%d" % (acc + 8 + 4 * g, acc + 10 + 4 * g))
            I("v_permlane32_swap_b32 v%d, v%d" % (acc + 9 + 4 * g, acc + 11 + 4 * g))
        for j in range(8):
            I("v_lshlrev_b32 v%d, 16, v%d" % (acc + 2 * j, acc + 8 + j))
            I("v_and_b32 v%d, 0xffff0000, v%d" % (acc + 2 * j + 1, acc + 8 + j))
        for j in range(8):
            I("v_pk_add_f32 %s, %s, %s" % (vr(acc + 2 * j, 2), vr(acc + 2 * j, 2), vr(bb + 2 * j, 2)))
    stamp()
    A.wait(vm=0)
    I("s_cmp_lg_u32 s3, 0")
    I("s_cbranch_scc1 L_gdone")
    I("v_and_b32 v77, 15, v0")
    I("v_lshlrev_b32 v77, 7, v77")
    I("s_mov_b32 s77, %d" % CNT)
    I("s_mov_b32 s51, %d" % SPIN)
    A.label("L_gloop")
    I("buffer_load_dword v78, v77, %s, s77 offen sc1" % sWS)
    A.wait(vm=0)
    I("v_cmp_ne_u32 vcc, 14, v78")
    I("s_cmp_eq_u64 vcc, 0")
    I("s_cbranch_scc1 L_gdone")
    I("s_sub_u32 s51, s51, 1")
    I("s_cmp_lg_u32 s51, 0")
    I("s_cbranch_scc1 L_gloop")
    A.label("L_gdone")
    I("s_barrier")
    stamp()
    I("s_mov_b32 s77, %d" % SUMS)
    rows = [16, 20, 24, 28, 56, 60, 64, 68]
    for r in range(8):
        if r:
            I("s_add_u32 s77, s77, 3072")
        I("buffer_load_dwordx4 %s, v75, %s, s77 offen sc1" % (vr(rows[r]), sWS))
    for (x, y) in ((0, 1), (2, 3), (4, 5), (6, 7), (0, 2), (4, 6), (0, 4)):
        for hf in range(2):
            I("v_pk_add_f32 %s, %s, %s" % (vr(rows[x] + 2 * hf, 2), vr(rows[x] + 2 * hf, 2), vr(rows[y] + 2 * hf, 2)))
    I("v_mov_b32 v20, %s" % f32(1e-6))
    for i in range(4):
        I("v_fmaak_f32 v%d, %s, v%d, v20" % (16 + i, "X", 16 + i) if False else "v_fmamk_f32 v%d, v%d, %s, v20" % (16 + i, 16 + i, f32(1.0 / SG ** 2)))
    for i in range(4):
        I("v_sqrt_f32 v%d, v%d" % (16 + i, 16 + i))
    I("v_add_f32 v20, v16, v17")
    I("v_add_f32 v21, v18, v19")
    I("v_add_f32 v20, v20, v21")
    I("v_cndmask_b32_e64 v20, 0, v20, s[80:81]")
    for n in (8, 4, 2, 1):
        I("v_add_f32_dpp v20, v20, v20 row_ror:%d row_mask:0xf bank_mask:0xf" % n)
    I("v_mov_b32 v21, v20")
    I("v_permlane32_swap_b32 v20, v21")
    I("v_add_f32 v20, v20, v21")
    I("v_mov_b32 v21, v20")
    I("v_permlane16_swap_b32 v20, v21")
    I("v_add_f32 v20, v20, v21")
    I("s_lshl_b32 s77, s3, 2")
    I("s_add_u32 s77, s77, %d" % PART)
    I("v_mov_b32 v21, s77")
    I("ds_write_b32 v21, v20")
    I("v_mov_b32 v21, %d" % PART)
    I("v_lshlrev_b32 v24, 16, v72")
    I("v_and_b32 v25, 0xffff0000, v72")
    I("v_lshlrev_b32 v26, 16, v73")
    I("v_and_b32 v27, 0xffff0000, v73")
    for i in range(4):
        I("v_mul_f32 v%d, v%d, v%d" % (16 + i, 16 + i, 24 + i))
    A.wait(lg=0)
    I("s_barrier")
    I("ds_read_b128 v[24:27], v21")
    I("v_add_f32 v24, v24, v25")
    I("v_add_f32 v26, v26, v27")
    I("v_add_f32 v24, v24, v26")
    I("v_mov_b32 v25, %s" % f32(1e-6 * SG))
    I("v_fmac_f32 v25, %s, v24" % f32(SG / 768))
    I("v_rcp_f32 v25, v25")
    I("v_mov_b32 v26, %s" % f32(1.0 / SG))
    for i in range(4):
        I("v_fma_f32 v%d, v%d, v25, v26" % (16 + i, 16 + i))
    I("ds_write_b128 v76, v[16:19]")
    A.wait(lg=0)
    I("s_barrier")
    for s in s_reads(0) + s_reads(1):
        I(s)
    for s in scale_ops(0):
        I(s)
    for s in raw_loads(3):
        I(s)
    stamp()

def phase2():
    for k in range(48):
        rho, w2, s = kinfo(k)
        kk = k & 7
        fill = []
        if k + 2 < 48:
            fill += s_reads(k + 2)
        if k + 1 < 48:
            fill += scale_ops(k + 1)
        if k + 4 < 48:
            fill += raw_loads(k + 4)
        wr = []
        if 1 <= rho <= 4 and kk < 7:
            u = 7 * (rho + 1) + kk
            for hf in range(2):
                wr.append("ds_write_b128 v%d, %s offset:%d" % (5 if (rho + 1) % 2 == 0 else 6, ar(h_loc2(u) + 4 * hf), kk * 2048 + hf * 1024))
        fill = fill[:2] + wr + fill[2:]
        order = []
        for p in range(7):
            order.append((0, p))
            if p < 4:
                order.append((1, p))
        nf = len(fill)
        pend = []
        done = 0
        for n, (ab, p) in enumerate(order):
            acc = vr(acc_of(ab, p), 16)
            if n in (0, 4, 8):
                A.wait_regs([ar({0: 4, 4: 12, 8: 24}[n])])
            I("v_mfma_f32_32x32x16_bf16 %s, %s, %s, %s" % (acc, vr(AF[k & 1] + 4 * ab), ar(4 * p), acc))
            last = (p >= 4) or ab == 1
            if last and k + 1 < 48:
                if kk == 7 and p < 3:
                    pend.append(b2_read(k + 1, p))
                    if p == 2:
                        A.wait(lg=0)
                        I("s_barrier")
                        for s_ in pend:
                            I(s_)
                else:
                    I(b2_read(k + 1, p))
            tgt = (nf * (n + 1) + 10) // 11
            while done < tgt:
                I(fill[done]); done += 1
        if kk == 7:
            stamp()
    for n, (ab, p) in enumerate(ITEMS):
        acc = acc_of(ab, p)
        D = 16 + 8 * (n % 4)
        for j in range(8):
            I("v_cvt_pk_bf16_f32 v%d, v%d, v%d" % (D + j, acc + 2 * j, acc + 2 * j + 1))
        for g in range(2):
            I("v_permlane32_swap_b32 v%d, v%d" % (D + 4 * g, D + 4 * g + 2))
            I("v_permlane32_swap_b32 v%d, v%d" % (D + 4 * g + 1, D + 4 * g + 3))
        for g in range(2):
            I("buffer_store_dwordx4 %s, v%d, %s, %s offen offset:%d" % (vr(D + 4 * g), 11 + ab, sO, tile_s(ab, p), 32 * g))
    if OPT["stamps"]:
        A.wait(vm=0)
        stamp()
        I("s_lshl_b32 s50, s2, 2")
        I("s_add_u32 s50, s50, s3")
        I("s_lshl_b32 s50, s50, 8")
        I("s_add_u32 s50, s50, %d" % DUMP)
        I("v_lshlrev_b32 v13, 2, v0")
        I("buffer_store_dword v14, v13, %s, s50 offen" % sWS)
    I("s_endpgm")

def dump_lds(nbytes):
    A.wait(vm=0, lg=0)
    I("s_barrier")
    I("v_lshlrev_b32 v8, 4, v15")
    I("s_mul_i32 s50, s2, 163840")
    I("s_add_u32 s50, s50, %d" % DUMP)
    for i in range(nbytes // 4096):
        I("ds_read_b128 v[16:19], v8")
        I("buffer_store_dwordx4 v[16:19], v8, %s, s50 offen" % sWS)
        I("v_add_u32 v8, 4096, v8")
        A.wait(vm=0)
    I("s_endpgm")

HEAD = """; ConvNeXt-V2 block: dwconv3x3 + LN + pw1 + GELU + GRN + pw2 + residual, one persistent launch.
; WG 0..31 repack weights, WG 32..255 own one 14x16 pixel patch each (hidden activations stay on chip).
; @launch grid=(256,1,1) block=(256,1,1) lds=163840
.amdgcn_target "amdgcn-amd-amdhsa--gfx950"
.text
.globl %s_kernel
.p2align 8
.type %s_kernel,@function
%s_kernel:
""" % (NAME, NAME, NAME)
TAIL = """.section .rodata,"a"
.p2align 6
.amdhsa_kernel %s_kernel
  .amdhsa_next_free_vgpr 512
  .amdhsa_next_free_sgpr 102
  .amdhsa_accum_offset 256
  .amdhsa_group_segment_fixed_size 0
  .amdhsa_kernarg_size 72
  .amdhsa_user_sgpr_count 2
  .amdhsa_user_sgpr_kernarg_segment_ptr 1
  .amdhsa_system_sgpr_workgroup_id_x 1
.end_amdhsa_kernel
""" % NAME

prologue()
helpers()
phase0()
if OPT["dbg"] == "Y":
    dump_lds(163840)
else:
    phase1()
    barrier_phase()
    phase2()
out = sys.argv[1] if len(sys.argv) > 1 else "cdna_kernels/%s.s" % NAME
open(out, "w").write(HEAD + "\n".join(A.out) + "\n" + TAIL)
print("instrs", A.count, "nop states", A.nops, "waits", A.waits, file=sys.stderr)
```

```python
import re

TRANS = ("v_exp_f32", "v_log_f32", "v_rcp_f32", "v_rsq_f32", "v_sqrt_f32", "v_sin_f32", "v_cos_f32")
REG_RE = re.compile(r"^(-|\|)?([vas])(\d+)\|?$")
RNG_RE = re.compile(r"^(-|\|)?([vas])\[(\d+):(\d+)\]\|?$")


def regs_of(tok):
    tok = tok.strip()
    m = REG_RE.match(tok)
    if m:
        return [(m.group(2), int(m.group(3)))]
    m = RNG_RE.match(tok)
    if m:
        return [(m.group(2), i) for i in range(int(m.group(3)), int(m.group(4)) + 1)]
    if tok == "vcc":
        return [("s", 106), ("s", 107)]
    if tok == "vcc_lo":
        return [("s", 106)]
    if tok == "vcc_hi":
        return [("s", 107)]
    if tok == "exec":
        return [("x", 0), ("x", 1)]
    if tok == "exec_lo":
        return [("x", 0)]
    if tok == "exec_hi":
        return [("x", 1)]
    if tok == "m0":
        return [("m", 0)]
    return []


class Ins:
    __slots__ = ("text", "op", "kind", "rd", "wr", "states", "passes", "srcC", "dpp", "trans", "stdata", "lds_dma", "ab")

    def __init__(self, text):
        self.text = text
        parts = text.split(None, 1)
        op = parts[0]
        self.op = op
        rest = parts[1] if len(parts) > 1 else ""
        toks = [t.strip() for t in rest.split(",")] if rest else []
        mods = ""
        if toks:
            last = toks[-1].split(None, 1)
            ops = []
            for i, t in enumerate(toks):
                sp = t.split(None, 1)
                ops.append(sp[0])
                if len(sp) > 1:
                    mods = sp[1] + "," + ",".join(toks[i + 1:])
                    break
            toks = ops
        self.states = 1
        self.passes = 0
        self.srcC = []
        self.ab = []
        self.dpp = False
        self.trans = False
        self.stdata = []
        self.lds_dma = False
        rd, wr = [], []
        R = [regs_of(t) for t in toks]
        if op.startswith("v_mfma"):
            self.kind = "mfma"
            self.passes = 8 if "32x32x16" in op else 4
            wr = R[0]
            self.ab = R[1] + R[2]
            self.srcC = R[3]
            rd = R[1] + R[2] + R[3]
        elif op.startswith("v_"):
            self.kind = "valu"
            base = op.replace("_e32", "").replace("_e64", "").replace("_dpp", "").replace("_sdwa", "")
            self.trans = base in TRANS
            self.dpp = ("_dpp" in op) or ("row_" in mods) or ("quad_perm" in mods)
            if "permlane" in op and "swap" in op:
                wr = R[0] + R[1]
                rd = R[0] + R[1]
            elif op.startswith("v_cmp"):
                wr = R[0]
                rd = sum(R[1:], [])
            elif base in ("v_add_co_u32", "v_sub_co_u32", "v_addc_co_u32", "v_subb_co_u32"):
                wr = R[0] + R[1]
                rd = sum(R[2:], [])
            else:
                wr = R[0]
                rd = sum(R[1:], [])
                if base in ("v_fmac_f32", "v_pk_fmac_f16", "v_dot2c_f32_bf16") or self.dpp:
                    rd = rd + R[0]
                if base == "v_cndmask_b32" and len(R) == 3:
                    rd = rd + regs_of("vcc")
        elif op.startswith("ds_"):
            self.kind = "ds"
            if op.startswith("ds_read") or op.startswith("ds_bpermute") or op.startswith("ds_swizzle"):
                wr = R[0]
                rd = sum(R[1:], [])
            else:
                rd = sum(R, [])
        elif op.startswith("buffer_") or op.startswith("global_"):
            self.kind = "vmem"
            ml = mods.replace(",", " ").split()
            if "lds" in ml or toks[-1] == "lds":
                self.lds_dma = True
                rd = sum(R, []) + [("m", 0)]
            elif "_load_" in op:
                wr = R[0]
                rd = sum(R[1:], [])
                if "d16" in op:
                    rd = rd
            elif "_store_" in op:
                rd = sum(R, [])
                if "x4" in op or "x3" in op:
                    self.stdata = R[0] if op.startswith("buffer_") else R[1]
            elif "_atomic_" in op:
                rd = sum(R, [])
                if "sc0" in ml:
                    wr = R[0]
            else:
                raise ValueError(text)
        elif op == "s_nop":
            self.kind = "nop"
            self.states = int(toks[0], 0) + 1
        elif op == "s_waitcnt" or op == "s_barrier" or op.startswith("s_branch") or op.startswith("s_cbranch") \
                or op in ("s_endpgm", "s_sleep", "s_setprio"):
            self.kind = "ctl"
        elif op.startswith("s_load") or op == "s_memtime" or op == "s_memrealtime":
            self.kind = "smem"
            wr = R[0]
            rd = sum(R[1:], [])
        elif op.startswith("s_"):
            self.kind = "salu"
            if op.startswith("s_cmp") or op.startswith("s_bitcmp"):
                rd = sum(R, [])
            else:
                wr = R[0]
                rd = sum(R[1:], [])
        else:
            raise ValueError("unknown instr " + text)
        self.rd = set(rd)
        self.wr = set(wr)


def need_states(p, c):
    n = 0
    if p.kind == "valu":
        vw = {r for r in p.wr if r[0] in "va"}
        sw = {r for r in p.wr if r[0] == "s"}
        if c.kind == "mfma" and (vw & c.rd):
            n = max(n, 2)
        if c.kind == "valu":
            if p.trans and not c.trans and (vw & c.rd):
                n = max(n, 1)
            if (c.dpp or "permlane" in c.op) and (vw & c.rd):
                n = max(n, 2)
            if ("readlane" in c.op or "readfirstlane" in c.op) and (vw & c.rd):
                n = max(n, 1)
            if sw & c.rd:
                n = max(n, 4 if ("readlane" in c.op or "writelane" in c.op) else 2)
        if c.kind == "vmem" and (sw & c.rd):
            n = max(n, 5)
        if c.kind in ("salu",) and (sw & c.rd):
            n = max(n, 1)
    elif p.kind == "mfma":
        big = p.passes + 4
        D = p.wr
        if c.kind == "mfma":
            if D & set(c.ab):
                n = max(n, big)
            cc = set(c.srcC)
            if D & cc:
                if not (cc == D and c.passes == p.passes):
                    n = max(n, p.passes + 2)
            elif D & c.wr:
                n = max(n, p.passes + 2)
        elif c.kind in ("valu", "ds", "vmem"):
            if D & (c.rd | c.wr):
                n = max(n, big)
            if c.kind == "valu" and (set(p.srcC) & c.wr):
                n = max(n, p.passes - 1)
    elif p.kind == "salu":
        if ("m", 0) in p.wr and c.lds_dma:
            n = max(n, 1)
    elif p.kind == "vmem":
        if p.stdata and (set(p.stdata) & c.wr):
            n = max(n, 2 if c.kind in ("valu", "mfma") else 1)
    return n


class Asm:
    def __init__(self):
        self.out = []
        self.hist = []
        self.vm = []
        self.lg = []
        self.smem = False
        self.nops = 0
        self.count = 0
        self.waits = 0
        self.padok = False

    def raw(self, text):
        self.out.append(text)

    def _push(self, ins):
        self.out.append(ins.text)
        self.hist.append(ins)
        if len(self.hist) > 24:
            self.hist.pop(0)
        self.count += 1

    def _wait(self, vm=None, lg=None):
        s = "s_waitcnt"
        if vm is not None:
            vm = min(vm, 63)
            s += " vmcnt(%d)" % vm
            if vm < len(self.vm):
                self.vm = self.vm[len(self.vm) - vm:] if vm else []
        if lg is not None:
            lg = min(lg, 15)
            s += " lgkmcnt(%d)" % lg
            if lg < len(self.lg):
                self.lg = self.lg[len(self.lg) - lg:] if lg else []
            if lg == 0:
                self.smem = False
        self.waits += 1
        self._push(Ins(s))
        if self.padok:
            self.out[-1] += " ;P"

    def _needed(self, q, regs):
        for i in range(len(q) - 1, -1, -1):
            if q[i][0] & regs:
                return len(q) - 1 - i
        return None

    def wait_regs(self, regs):
        rs = set()
        for r in regs:
            rs |= set(regs_of(r))
        nv = self._needed(self.vm, rs)
        nl = self._needed(self.lg, rs)
        if nv is not None or nl is not None:
            self._wait(nv, nl)

    def wait_tag(self, tag, lg=None):
        nv = nl = None
        for i in range(len(self.vm) - 1, -1, -1):
            if self.vm[i][1] == tag:
                nv = len(self.vm) - 1 - i
                break
        for i in range(len(self.lg) - 1, -1, -1):
            if self.lg[i][1] == tag:
                nl = len(self.lg) - 1 - i
                break
        if lg is not None:
            nl = lg if nl is None else min(nl, lg)
        if nv is not None or nl is not None:
            self._wait(nv, nl)

    def wait(self, vm=None, lg=None):
        self._wait(vm, lg)

    def I(self, text, tag=None):
        if isinstance(text, list):
            for t in text:
                self.I(t)
            return None
        if isinstance(text, tuple):
            if text[0] == "WAIT":
                return self.wait_regs(text[1])
            text, tag = text
        ins = Ins(text)
        touched = ins.rd | ins.wr
        if ins.kind not in ("ctl", "nop"):
            part = set()
            if ins.kind == "vmem" and "d16" in ins.op:
                part = ins.wr
            nv = self._needed(self.vm, touched - part)
            nl = self._needed(self.lg, touched)
            if self.smem and any(r in self.smem_regs for r in touched):
                nl = 0
            if nv is not None or nl is not None:
                self._wait(nv, nl)
        need = 0
        dist = 0
        for p in reversed(self.hist):
            n = need_states(p, ins)
            if n - dist > need:
                need = n - dist
            dist += p.states
            if dist >= 14:
                break
        while need > 0:
            k = min(need, 8)
            self._push(Ins("s_nop %d" % (k - 1)))
            self.nops += k
            need -= k
        self._push(ins)
        if ins.kind == "vmem":
            self.vm.append((set(ins.wr), tag))
            assert len(self.vm) <= 63, "too many vmem outstanding"
        elif ins.kind == "ds":
            self.lg.append((set(ins.wr), tag))
        elif ins.kind == "smem":
            if not self.smem:
                self.smem_regs = set()
            self.smem = True
            self.smem_regs |= ins.wr
        return ins

    def label(self, name, settle=True):
        if settle:
            self.settle()
        self.out.append(name + ":")

    def settle(self):
        need = 0
        dist = 0
        for p in reversed(self.hist):
            if p.kind == "mfma":
                need = max(need, p.passes + 4 - dist)
            elif p.kind == "valu":
                need = max(need, 5 - dist)
            elif p.kind in ("salu", "vmem"):
                need = max(need, 2 - dist)
            dist += p.states
            if dist >= 14:
                break
        while need > 0:
            k = min(need, 8)
            self._push(Ins("s_nop %d" % (k - 1)))
            need -= k

    def state(self):
        return (list(self.vm), list(self.lg))

    def set_state(self, st):
        self.vm = list(st[0])
        self.lg = list(st[1])
```

```python
import sys, math, struct
sys.path.insert(0, "gen")
from asmlib import Asm

NAME = "standalone__modern_conv_block_convnext_v2__vision"
OPT = dict(dbg="", stamps=False)
for a_ in sys.argv[2:]:
    k, v = a_.split("=")
    OPT[k] = v

def f32(x):
    return "0x%08x" % struct.unpack("<I", struct.pack("<f", x))[0]

K1 = 2.0 * math.log2(math.e) * math.sqrt(2.0 / math.pi)
K3 = K1 * 0.044715
SG = K3 ** (1.0 / 3.0)
CP = K1 / SG
HUGE = "0x40000000"
XBYTES = 224 * 224 * 192 * 2
W1F, W2F, BIAS, SUMS, CNT = 0, 294912, 589824, 590848, 615424
WSBYTES = 1 << 20
DUMP = 1 << 20
ROWB = 7168
YA, ETAB = 114688, 114688
BUF0, BUF1, STAB, PART, DUMMY = 36864, 94208, 151552, 154624, 155648

sX, sO, sWS, sD, sA, sB = "s[24:27]", "s[28:31]", "s[32:35]", "s[36:39]", "s[40:43]", "s[44:47]"
SPIN = 20000

A = Asm()
I = A.I

def vr(b, n=4):
    return "v[%d:%d]" % (b, b + n - 1)
def ar(b, n=4):
    return "a[%d:%d]" % (b, b + n - 1)

def srd(base, ptr, nbytes):
    I("s_mov_b32 s%d, s%d" % (base, ptr))
    I("s_and_b32 s%d, s%d, 0xffff" % (base + 1, ptr + 1))
    I("s_mov_b32 s%d, %s" % (base + 2, nbytes))
    I("s_mov_b32 s%d, 0x00020000" % (base + 3))

stamp_n = [0]
def stamp(grp="1"):
    if not OPT["stamps"] or not (set(grp) & set(OPT["stamps"])):
        return
    n = stamp_n[0]
    stamp_n[0] += 1
    I("s_memtime s[90:91]")
    A.wait(lg=0)
    I("v_writelane_b32 v14, s90, %d" % n)
    I("s_memrealtime s[90:91]")
    A.wait(lg=0)
    I("v_writelane_b32 v14, s90, %d" % (32 + n))

def spin(label, voff_bytes, target, vtmp):
    I("v_readfirstlane_b32 s50, v%d" % vtmp)
    I("s_mov_b32 s51, %d" % SPIN)
    A.label(label + "_loop")
    I("s_cmp_ge_u32 s50, %d" % target)
    I("s_cbranch_scc1 %s_done" % label)
    I("buffer_load_dword v%d, off, %s, 0 offset:%d sc1" % (vtmp, sD, voff_bytes))
    A.wait(vm=0)
    I("v_readfirstlane_b32 s50, v%d" % vtmp)
    I("s_sub_u32 s51, s51, 1")
    I("s_cmp_lg_u32 s51, 0")
    I("s_cbranch_scc1 %s_loop" % label)
    A.label(label + "_done")

def prologue():
    I("s_cmp_ge_u32 s2, 256")
    I("s_cbranch_scc1 L_exit")
    I("s_load_dwordx16 s[4:19], s[0:1], 0")
    I("s_load_dwordx2 s[20:21], s[0:1], 64")
    I("v_mov_b32 v15, v0")
    I("v_lshrrev_b32 v1, 6, v0")
    I("v_and_b32 v0, 63, v0")
    I("v_readfirstlane_b32 s3, v1")
    I("v_lshlrev_b32 v1, 4, v0")
    I("s_cmp_ge_u32 s2, 32")
    I("s_cbranch_scc1 L_main")

def helpers():
    I("v_and_b32 v2, 31, v0")
    I("v_lshrrev_b32 v3, 5, v0")
    A.wait(lg=0)
    srd(32, 20, WSBYTES)
    srd(36, 18, 256)
    I("s_cmp_ge_u32 s2, 6")
    I("s_cbranch_scc1 L_hw1")
    srd(40, 10, 768 * 192 * 2)
    srd(44, 14, 768 * 2)
    I("v_mul_u32_u24 v4, 1536, v3")
    I("v_lshl_add_u32 v4, v2, 1, v4")
    I("s_lshl_b32 s50, s2, 6")
    I("v_add_u32 v4, s50, v4")
    I("v_add_u32 v5, 3072, v4")
    I("v_lshlrev_b32 v6, 3, v3")
    I("s_mul_i32 s52, s3, 12")
    I("s_mul_i32 s53, s2, 48")
    for n in range(12):
        I("s_add_u32 s54, s52, %d" % n)
        I("s_lshr_b32 s55, s54, 3")
        I("s_bfe_u32 s56, s54, 0x20001")
        I("s_mul_i32 s56, s56, 6")
        I("s_add_u32 s55, s55, s56")
        I("s_lshl_b32 s55, s55, 1")
        I("s_and_b32 s56, s54, 1")
        I("s_add_u32 s55, s55, s56")
        I("s_mul_i32 s%d, s55, %d" % (60 + n, 16 * 384))
        I("s_lshl_b32 s%d, s55, 5" % (72 + n))
        for j in range(8):
            I("buffer_load_ushort v%d, v%d, %s, s%d offen offset:%d" % (144 + 8 * (n & 3) + j, 4 + (j >> 2), sA, 60 + n, (j & 3) * 384))
        bb = 96 + 4 * n
        I("buffer_load_dwordx2 %s, v6, %s, s%d offen" % (vr(bb, 2), sB, 72 + n))
        I("buffer_load_dwordx2 %s, v6, %s, s%d offen offset:16" % (vr(bb + 2, 2), sB, 72 + n))
        if n % 4 == 3:
            for m in range(n - 3, n + 1):
                b = 32 + 4 * m
                for j in range(4):
                    I("v_lshl_or_b32 v%d, v%d, 16, v%d" % (b + j, 144 + 8 * (m & 3) + 2 * j + 1, 144 + 8 * (m & 3) + 2 * j))
                I("s_add_u32 s54, s52, s53")
                I("s_add_u32 s54, s54, %d" % m)
                I("s_lshl_b32 s54, s54, 10")
                I("s_add_u32 s54, s54, %d" % W2F)
                I("buffer_store_dwordx4 %s, v1, %s, s54 offen sc1" % (vr(b), sWS))
                I("v_mfma_f32_32x32x16_bf16 v[16:31], %s, %s, %s" % (vr(b), vr(96 + 4 * m), "0" if m == 0 else "v[16:31]"))
    I("v_lshlrev_b32 v7, 4, v3")
    I("s_lshl_b32 s54, s3, 7")
    I("v_add_u32 v7, s54, v7")
    for g in range(4):
        I("ds_write_b128 v7, %s offset:%d" % (vr(16 + 4 * g), 32 * g))
    A.wait(lg=0)
    I("s_barrier")
    I("v_lshlrev_b32 v7, 2, v2")
    for w in range(4):
        I("ds_read_b32 v%d, v7 offset:%d" % (8 + w, 128 * w))
    I("v_add_f32 v8, v8, v9")
    I("v_add_f32 v10, v10, v11")
    I("v_add_f32 v8, v8, v10")
    I("s_lshl_b32 s54, s2, 7")
    I("s_add_u32 s54, s54, %d" % BIAS)
    I("buffer_store_dword v8, v7, %s, s54 offen sc1" % sWS)
    I("s_movk_i32 s55, 128")
    I("s_branch L_hfin")
    A.label("L_hw1")
    A.vm = []; A.lg = []
    srd(40, 8, 192 * 768 * 2)
    I("v_mul_u32_u24 v4, %d, v3" % (8 * 1536))
    I("v_lshl_add_u32 v4, v2, 1, v4")
    I("v_add_u32 v5, %d, v4" % (2 * 1536))
    I("v_add_u32 v6, %d, v4" % (4 * 1536))
    I("v_add_u32 v7, %d, v4" % (6 * 1536))
    I("s_sub_u32 s52, s2, 6")
    I("s_lshl_b32 s53, s52, 2")
    I("s_add_u32 s53, s53, s3")
    for n in range(3):
        I("s_add_u32 s54, s53, %d" % (104 * n))
        I("s_min_u32 s54, s54, 287")
        I("s_mul_i32 s55, s54, 5462")
        I("s_lshr_b32 s55, s55, 16")
        I("s_mul_i32 s56, s55, 12")
        I("s_sub_u32 s56, s54, s56")
        I("s_mul_i32 s57, s56, %d" % (16 * 1536))
        I("s_lshl_b32 s55, s55, 6")
        I("s_add_u32 s%d, s57, s55" % (60 + n))
        I("s_lshl_b32 s%d, s54, 10" % (64 + n))
        for j in range(8):
            vo = 4 + (j >> 1)
            I("buffer_load_ushort v%d, v%d, %s, s%d offen offset:%d" % (144 + 8 * n + j, vo, sA, 60 + n, (j & 1) * 1536))
    for r in range(4):
        I("v_mov_b32 v%d, 0" % (16 + r))
    I("s_lshl_b32 s54, s52, 10")
    I("s_add_u32 s54, s54, %d" % SUMS)
    I("buffer_store_dwordx4 v[16:19], v1, %s, s54 offen sc1" % sWS)
    for n in range(3):
        for j in range(4):
            I("v_lshl_or_b32 v%d, v%d, 16, v%d" % (32 + 4 * n + j, 144 + 8 * n + 2 * j + 1, 144 + 8 * n + 2 * j))
        I("buffer_store_dwordx4 %s, v1, %s, s%d offen sc1" % (vr(32 + 4 * n), sWS, 64 + n))
    I("s_mov_b32 s55, 0")
    A.label("L_hfin")
    A.wait(vm=0, lg=0)
    I("s_barrier")
    I("s_cmp_lg_u32 s3, 0")
    I("s_cbranch_scc1 L_exit")
    I("s_mov_b64 exec, 1")
    I("v_mov_b32 v8, 1")
    I("buffer_atomic_add v8, off, %s, s55 sc1" % sD)
    A.wait(vm=0)
    A.label("L_exit", settle=False)
    I("s_endpgm")

EB, EW = 912, 9216
DV = 200
VBA = 16
VET = 25
BRG = 32
CACC = 104
ST = 176
VY0, VY1, VSW, VSR = 29, 30, 31, 12
KN = 1.0 / SG ** 2

def dma_ops(a):
    so, sn = ("s84", "s86") if a % 2 == 0 else ("s86", "s84")
    fil = ["s_add_u32 s83, s83, 2", "s_mul_i32 %s, s83, %d" % (sn, 224 * 384), "s_cmp_lt_u32 s83, 224", "s_mov_b64 exec, 0xffffff"]
    L = []
    for n in range(4):
        G = ["s_add_u32 m0, s82, %d" % (a * 2 * ROWB + n * 1024), fil[n],
             ("buffer_load_dwordx4 v%d, %s, %s offen lds" % (DV + n, sX, so), "F%d" % a)]
        if n == 2:
            G.append("s_cselect_b32 %s, %s, %s" % (sn, sn, HUGE))
        if n == 3:
            G.append("s_mov_b64 exec, -1")
        L.append(G)
    return L

def emit(L):
    for s in L:
        I(s)

def cacc(row, i):
    return CACC + 24 * ((row >> 1) % 3) + 12 * (row & 1) + 4 * i

def f_reads(a):
    L = []
    for dx in range(3):
        for i in range(3):
            L.append("ds_read_b128 %s, v%d offset:%d" % (vr(BRG + 36 * (a & 1) + 4 * (3 * dx + i)), VBA + 3 * dx + i,
                                                          (a if a < 5 else a - 5) * 2 * ROWB))
    return L

def conv_mfmas(a, start):
    L = []
    for dx in range(3):
        for i in range(3):
            for (T, row) in (((0, 2 * a), (2, 2 * a + 1)) if start else ((1, 2 * a - 2), (3, 2 * a - 1))):
                acc = vr(cacc(row, i))
                L.append("v_mfma_f32_16x16x32_bf16 %s, %s, %s, %s" % (acc, ar(4 * (9 * T + 3 * dx + i)), vr(BRG + 36 * (a & 1) + 4 * (3 * dx + i)),
                                                                      "0" if (start and dx == 0) else acc))
    return L

def sx_reads(t):
    return ["ds_read_b128 %s, v%d offset:%d" % (vr(ST + 4 * q), VSR, 1280 * t + 16 * q) for q in range(4)]

def stat_math():
    L = []
    for q in range(4):
        L.append("v_add_f32 v%d, v%d, v%d" % (ST + 4 * q, ST + 4 * q, ST + 4 * q + 1))
        L.append("v_add_f32 v%d, v%d, v%d" % (ST + 4 * q + 2, ST + 4 * q + 2, ST + 4 * q + 3))
    for q in range(4):
        L.append("v_add_f32 v%d, v%d, v%d" % (ST + 4 * q, ST + 4 * q, ST + 4 * q + 2))
    for r in range(2):
        L.append("v_fma_f32 v%d, v%d, s76, v13" % (ST + 8 * r + 4, ST + 8 * r + 4))
        L.append("v_mul_f32 v%d, s77, v%d" % (ST + 8 * r, ST + 8 * r))
    for r in range(2):
        L.append("v_fma_f32 v%d, -v%d, v%d, v%d" % (ST + 8 * r + 4, ST + 8 * r, ST + 8 * r, ST + 8 * r + 4))
    for r in range(2):
        L.append("v_max_f32 v%d, v%d, v13" % (ST + 8 * r + 4, ST + 8 * r + 4))
    for r in range(2):
        L.append("v_rsq_f32 v%d, v%d" % (ST + 16 + 2 * r, ST + 8 * r + 4))
    for r in range(2):
        L.append("v_mul_f32 v%d, s78, v%d" % (ST + 8 * r, ST + 8 * r))
    for r in range(2):
        L.append("v_mul_f32 v%d, v%d, v%d" % (ST + 17 + 2 * r, ST + 8 * r, ST + 16 + 2 * r))
    return L

def norm_ops(t):
    L = []
    for r in range(2):
        for j in range(6):
            x = cacc(2 * t + r, 0) + 2 * j
            p = vr(ST + 16 + 2 * r, 2)
            L.append("v_pk_fma_f32 %s, %s, %s, %s op_sel:[0,0,1] op_sel_hi:[1,0,1]" % (vr(x, 2), vr(x, 2), p, p))
    return L

def y_out(t):
    L = []
    for r in range(2):
        for i in range(3):
            x = cacc(2 * t + r, i)
            d = ST + 6 * r + 2 * i
            L.append("v_cvt_pk_bf16_f32 v%d, v%d, v%d" % (d, x, x + 1))
            L.append("v_cvt_pk_bf16_f32 v%d, v%d, v%d" % (d + 1, x + 2, x + 3))
            L.append("ds_write_b64 v%d, %s offset:%d" % (VY0 if t < 4 else VY1, vr(d, 2), 12288 * (t % 4) + 1024 * i + 256 * r))
    return L

def part_stats(t):
    S, Q = ST + 20, ST + 12
    for j in range(6):
        for r in range(2):
            x = vr(cacc(2 * t + r, 0) + 2 * j, 2)
            d = vr(Q + 2 * r, 2)
            if j == 0:
                I("v_pk_mul_f32 %s, %s, %s" % (d, x, x))
            else:
                I("v_pk_fma_f32 %s, %s, %s, %s" % (d, x, x, d))
            if j == 1:
                I("v_pk_add_f32 %s, %s, %s" % (vr(S + 2 * r, 2), vr(cacc(2 * t + r, 0), 2), x))
            elif j > 1:
                I("v_pk_add_f32 %s, %s, %s" % (vr(S + 2 * r, 2), vr(S + 2 * r, 2), x))
    I("v_add_f32 v%d, v%d, v%d" % (Q, Q, Q + 1))
    I("v_add_f32 v%d, v%d, v%d" % (Q + 2, Q + 2, Q + 3))
    I("v_add_f32 v%d, v%d, v%d" % (S, S, S + 1))
    I("v_add_f32 v%d, v%d, v%d" % (S + 2, S + 2, S + 3))
    I("v_permlane32_swap_b32 v%d, v%d" % (Q, Q + 2))
    I("v_add_f32 v%d, v%d, v%d" % (Q, Q, Q + 2))
    I("v_permlane32_swap_b32 v%d, v%d" % (S, S + 2))
    I("v_add_f32 v%d, v%d, v%d" % (S, S, S + 2))
    I("v_permlane16_swap_b32 v%d, v%d" % (S, Q))
    I("v_add_f32 v%d, v%d, v%d" % (S, S, Q))
    I("ds_write_b32 v%d, v%d offset:%d" % (VSW, S, 1280 * t))

def weave(mf, fill, dens=None):
    n = len(mf)
    done = 0
    for j, m in enumerate(mf):
        I(m)
        tgt = (len(fill) * (j + 1) + n - 1) // n
        if dens:
            tgt = max(tgt, min(len(fill), dens * (j + 1)))
        while done < tgt:
            I(fill[done]); done += 1

def phase0():
    A.label("L_main")
    A.vm = []; A.lg = []
    A.smem = True
    if OPT["stamps"]:
        I("v_mov_b32 v14, 0")
        stamp("123456")
    I("s_sub_u32 s50, s2, 32")
    I("s_lshr_b32 s50, s50, 3")
    I("s_and_b32 s85, s50, 3")
    I("s_and_b32 s51, s2, 7")
    I("s_lshl_b32 s51, s51, 1")
    I("s_cmp_ge_u32 s50, 14")
    I("s_cselect_b32 s52, 1, 0")
    I("s_cselect_b32 s53, 14, 0")
    I("s_add_u32 s51, s51, s52")
    I("s_sub_u32 s50, s50, s53")
    I("s_mul_i32 s48, s51, 14")
    I("s_lshl_b32 s49, s50, 4")
    I("s_sub_u32 s50, s49, 1")
    I("s_mov_b32 s51, -24")
    I("s_lshr_b32 s52, s3, 1")
    I("s_and_b32 s53, s3, 1")
    I("s_mul_i32 s82, s52, %d" % ROWB)
    I("s_mul_i32 s53, s53, 216")
    I("s_lshl_b32 s54, s53, 4")
    I("s_add_u32 s82, s82, s54")
    I("s_add_u32 s83, s48, s52")
    I("s_sub_u32 s83, s83, 1")
    I("s_mul_i32 s84, s83, %d" % (224 * 384))
    I("s_cmp_lt_u32 s83, 224")
    I("s_cselect_b32 s84, s84, %s" % HUGE)
    I("v_mov_b32 v44, %s" % HUGE)
    I("v_add_u32 v3, s53, v0")
    for i in range(3):
        if i:
            I("v_add_u32 v3, 64, v3")
        I("v_mul_u32_u24 v4, 2731, v3")
        I("v_lshrrev_b32 v4, 16, v4")
        I("v_mad_i32_i24 v2, v4, s51, v3")
        I("v_bfe_u32 v5, v4, 1, 3")
        I("v_xor_b32 v2, v2, v5")
        I("v_add_u32 v4, s50, v4")
        if i == 0:
            I("v_cmp_le_i32 vcc, 0, v4")
            I("v_add_u32 v6, 8, v4")
        I("v_mul_i32_i24 v4, 384, v4")
        I("v_lshl_add_u32 v%d, v2, 4, v4" % (DV + i))
        if i == 0:
            I("v_xor_b32 v4, 64, v%d" % DV)
            I("v_add_u32 v%d, 3072, v4" % (DV + 3))
            I("v_cndmask_b32 v%d, v44, v%d, vcc" % (DV, DV))
            I("v_cmp_gt_u32 vcc, 224, v6")
            I("v_cndmask_b32 v%d, v44, v%d, vcc" % (DV + 3, DV + 3))
    I("v_min_u32 v6, 47, v0")
    I("s_mul_i32 s52, s3, 96")
    I("v_lshl_add_u32 v7, v6, 1, s52")
    A.wait(lg=0)
    stamp("3")
    srd(24, 4, XBYTES)
    srd(40, 6, 9 * 192 * 2)
    for t in range(9):
        I("buffer_load_ushort v%d, v7, %s, 0 offen offset:%d" % (48 + t, sA, t * 384), tag="dw")
    if OPT.get("exp"):
        srd(32, 20, 0x8000000)
        stamp("5")
        nup = int(OPT["exp"])
        for a in range(nup):
            emit(dma_ops(a))
            stamp("5")
        A.wait_tag("dw")
        stamp("5")
        for a in range(8):
            A.wait_tag("F%d" % a)
            stamp("5")
            if a + nup < 8:
                emit(dma_ops(a + nup))
                stamp("5")
        finish()
        return
    emit(dma_ops(0))
    emit(dma_ops(1))
    stamp("3")
    for r in range(4):
        I("v_mov_b32 v%d, 0" % (40 + r))
    I("s_mul_i32 s53, s3, %d" % EW)
    I("s_add_u32 s53, s53, %d" % ETAB)
    I("v_add_u32 v2, s53, v1")
    for i in range(9):
        I("ds_write_b128 v2, v[40:43] offset:%d" % (1024 * i))
    srd(28, 16, XBYTES)
    srd(32, 20, WSBYTES if not (OPT["dbg"] or OPT["stamps"]) else 0x8000000)
    srd(36, 18, 256)
    srd(44, 12, 768 * 2)
    I("v_lshrrev_b32 v8, 4, v6")
    I("v_mul_u32_u24 v8, %d, v8" % EB)
    I("v_and_b32 v9, 15, v6")
    I("v_lshl_add_u32 v8, v9, 4, v8")
    I("v_and_b32 v9, 7, v6")
    I("v_lshl_add_u32 v8, v9, 1, v8")
    I("v_add_u32 v8, s53, v8")
    I("v_and_b32 v10, 15, v0")
    I("v_lshrrev_b32 v11, 4, v0")
    I("v_and_b32 v3, 1, v11")
    I("v_lshrrev_b32 v4, 1, v11")
    I("v_lshl_add_u32 v9, v10, 4, s53")
    I("v_lshlrev_b32 v2, 7, v4")
    I("v_sub_u32 v2, 896, v2")
    I("v_add_u32 v2, s53, v2")
    I("v_lshrrev_b32 v5, 3, v10")
    I("v_cmp_eq_u32 vcc, v5, v4")
    I("v_lshl_add_u32 v5, v3, 8, v9")
    I("v_cndmask_b32 v%d, v2, v5, vcc" % (VET + 0))
    I("v_add_u32 v5, 256, v5")
    I("v_cndmask_b32 v%d, v2, v5, vcc" % (VET + 3))
    I("v_cmp_eq_u32 s[86:87], 0, v3")
    I("s_and_b64 s[80:81], vcc, s[86:87]")
    I("s_andn2_b64 s[86:87], vcc, s[86:87]")
    I("v_add_u32 v5, 512, v9")
    I("v_cndmask_b32_e64 v%d, v2, v5, s[80:81]" % (VET + 1))
    I("v_cndmask_b32_e64 v%d, v2, v9, s[86:87]" % (VET + 2))
    I("s_mul_i32 s52, s3, 6")
    I("v_add_u32 v5, s52, v4")
    I("v_mul_u32_u24 v3, %d, v3" % ROWB)
    for dx in range(3):
        I("v_add_u32 v2, %d, v10" % dx if dx else "v_mov_b32 v2, v10")
        I("v_mul_u32_u24 v9, 384, v2")
        I("v_add_u32 v9, v9, v3")
        I("v_bfe_u32 v2, v2, 1, 3")
        for i in range(3):
            d = VBA + 3 * dx + i
            I("v_add_u32 v%d, %d, v5" % (d, 2 * i))
            I("v_xor_b32 v%d, v%d, v2" % (d, d))
            I("v_lshl_add_u32 v%d, v%d, 4, v9" % (d, d))
    I("v_lshlrev_b32 v%d, 9, v4" % VY1)
    I("v_lshl_add_u32 v%d, v10, 4, v%d" % (VY1, VY1))
    I("v_and_b32 v2, 1, v11")
    I("v_lshl_add_u32 v%d, v2, 3, v%d" % (VY1, VY1))
    I("s_mul_i32 s52, s3, 3072")
    I("v_add_u32 v%d, s52, v%d" % (VY1, VY1))
    I("v_add_u32 v%d, %d, v%d" % (VY0, YA, VY1))
    I("v_mul_u32_u24 v%d, 80, v10" % VSR)
    I("v_add_u32 v%d, %d, v%d" % (VSR, STAB, VSR))
    I("s_lshl_b32 s52, s3, 2")
    I("v_lshl_add_u32 v%d, v11, 4, s52" % VSW)
    I("v_add_u32 v%d, v%d, v%d" % (VSW, VSW, VSR))
    I("v_mov_b32 v13, %s" % f32(KN * 1e-5))
    I("s_mov_b32 s76, %s" % f32(KN / 192))
    I("s_mov_b32 s77, %s" % f32(-math.sqrt(KN) / 192))
    I("s_mov_b32 s78, %s" % f32(SG))
    stamp()
    emit(dma_ops(2))
    stamp("3")
    emit(dma_ops(3))
    I("s_getpc_b64 s[88:89]")
    A.label("L_pf", settle=False)
    I("s_and_b32 s89, s89, 0xffff")
    I("s_mov_b32 s90, L_end-L_pf")
    I("s_mov_b32 s91, 0x00020000")
    I("s_lshl_b32 s85, s85, 15")
    I("v_lshlrev_b32 v9, 7, v15")
    I("buffer_load_dword v207, v9, s[88:91], s85 offen")
    stamp()
    A.wait_tag("dw")
    stamp()
    for dy in range(3):
        for dx in range(3):
            I("ds_write_b16 v8, v%d offset:%d" % (48 + 3 * dy + dx, dx * 3 * EB + dy * 256))
    for T in (0, 2, 1, 3):
        for f in range(9):
            I("ds_read_b128 %s, v%d offset:%d" % (ar(4 * (9 * T + f)), VET + T, f * EB))
    I("v_add_u32 v2, 4096, v1")
    I("v_add_u32 v3, 8192, v1")
    I("v_add_u32 v4, %d, v1" % YA)
    I("s_mul_i32 s52, s3, 14336")
    I("s_add_u32 s52, s52, %d" % BUF0)
    I("v_add_u32 v5, s52, v1")
    I("v_add_u32 v6, %d, v5" % (BUF1 - BUF0))
    I("s_mul_i32 s52, s3, %d" % (6 * 12288))
    for r in range(1, 6):
        I("s_add_u32 s%d, s52, %d" % (52 + r, r * 12288))
    I("s_mov_b32 s68, %s" % f32(CP)); I("s_mov_b32 s69, %s" % f32(CP))
    I("s_mov_b32 s70, 1.0"); I("s_mov_b32 s71, 1.0")
    I("s_mov_b32 s72, 0xaaaaaaaa"); I("s_mov_b32 s73, 0xaaaaaaaa")
    I("s_mov_b32 s79, 0xffff0000")
    p1_addr()
    emit(dma_ops(4))
    stamp()
    A.wait_tag("F1")
    I("s_barrier")
    stamp()
    emit(f_reads(0))
    A.wait(lg=0)
    weave(conv_mfmas(0, True), f_reads(1) + dma_ops(5), 1)
    for a in range(1, 9):
        if a < 7:
            A.wait_tag("F%d" % (a + 1), lg=0)
        else:
            A.wait(lg=0)
        if a in (5, 6):
            stamp("4")
        I("s_barrier")
        stamp("14" if a in (5, 6) else "1")
        if a == 4:
            for r in range(9):
                I("v_add_u32 v%d, %d, v%d" % (VBA + r, 10 * ROWB, VBA + r))
            I("v_add_u32 v%d, %d, v%d" % (VSW, BUF0 - 3840 - STAB, VSW))
        if a == 5:
            I("v_add_u32 v%d, %d, v%d" % (VSR, BUF0 - 3840 - STAB, VSR))
        fa = []
        if a >= 2:
            fa += sx_reads(a - 2) + [("WAIT", [vr(ST + 12)])] + stat_math()
        if a < 8:
            if a >= 2:
                mf = conv_mfmas(a, False)
                weave(mf[:4], fa[:4], 2)
                weave(mf[4:], fa[4:])
            else:
                weave(conv_mfmas(a, False), fa)
        else:
            if OPT["dbg"] != "Y":
                for ks in range(12):
                    I(b_read(0, ks))
            emit(fa)
        if a == 5:
            stamp("4")
        if a >= 2:
            emit(norm_ops(a - 2))
        if a == 5:
            stamp("4")
        if a < 8:
            part_stats(a - 1)
        if a == 5:
            stamp("4")
        if a == 6:
            spin("L_c1", 0, 26, 8)
        fc = []
        yo = y_out(a - 2) if a >= 2 else []
        fr = f_reads(a + 1) if a + 1 < 8 else []
        while yo or fr:
            fc += yo[:3] + fr[:2]
            yo = yo[3:]; fr = fr[2:]
        if a < 3:
            fc += dma_ops(a + 5)
        if a == 3:
            fc.append("buffer_load_dword v8, off, %s, 0 sc1" % sD)
        if a == 6:
            for ks in range(12):
                fc.append("buffer_load_dwordx4 %s, v%d, %s, s52 offen offset:%d sc1" % (vr(208 + 4 * ks), 1 + (ks >> 2), sWS, (ks & 3) * 1024))
        if a < 7:
            weave(conv_mfmas(a, True), fc, 2)
            if a == 5:
                stamp("4")
                stamp("4")
        elif a == 8 and OPT["dbg"] != "Y":
            n = 0
            for ks in range(12):
                I(mfma1(0, ks))
                I(b_read(1, ks))
                while n < (len(fc) * (ks + 1) + 11) // 12:
                    I(fc[n]); n += 1
        else:
            emit(fc)
    stamp()

SQ = 16
XB = (32, 48)
TB = (64, 80)
BR = 96
def a_reg(r, ks):
    if r == 0:
        return vr(208 + 4 * ks)
    return ar((48 if r & 1 else 0) + 4 * ks)

def h_loc(u):
    if u < 7:
        return ("lds", u)
    if u < 27:
        return ("v", 96 + 8 * (u - 7))
    if u < 41:
        return ("a", 144 + 8 * (u - 27))
    return ("t", 0)

def b_read(u, ks):
    t = u % 7
    if t < 4:
        return "ds_read_b128 %s, v4 offset:%d" % (ar(BR + 4 * ks), t * 12288 + ks * 1024)
    return "ds_read_b128 %s, v1 offset:%d" % (ar(BR + 4 * ks), (t - 4) * 12288 + ks * 1024)

def mfma1(u, ks):
    X = vr(XB[u & 1], 16)
    return "v_mfma_f32_32x32x16_bf16 %s, %s, %s, %s" % (X, a_reg(u // 7, ks), ar(BR + 4 * ks), "0" if ks == 0 else X)

def store_ops(u):
    T = TB[u & 1]
    kind, b = h_loc(u)
    halves = []
    for hf in range(2):
        L = []
        for i in range(4 * hf, 4 * hf + 4):
            dst = b + i if kind == "v" else T + i
            L.append("v_cvt_pk_bf16_f32 v%d, v%d, v%d" % (dst, T + 2 * i, T + 2 * i + 1))
        if kind == "a":
            for i in range(4 * hf, 4 * hf + 4):
                L.append("v_accvgpr_write_b32 a%d, v%d" % (b + i, T + i))
        if kind == "lds":
            L.append("ds_write_b128 v5, %s offset:%d" % (vr(T + 4 * hf), b * 2048 + hf * 1024))
        halves.append(L)
    return halves

def reduce_ops(r):
    L = []
    for i in range(8):
        L.append("v_permlane16_swap_b32 v%d, v%d" % (SQ + i, SQ + i + 8))
    for i in range(8):
        L.append("v_add_f32 v%d, v%d, v%d" % (SQ + i, SQ + i, SQ + i + 8))
    for i in range(4):
        L.append("v_add_f32_dpp v%d, v%d, v%d row_ror:8 row_mask:0xf bank_mask:0x3" % (SQ + i, SQ + i, SQ + i))
    for i in range(4):
        L.append("v_add_f32_dpp v%d, v%d, v%d row_ror:8 row_mask:0xf bank_mask:0xc" % (SQ + i, SQ + i + 4, SQ + i + 4))
    for i in range(2):
        L.append("v_add_f32_dpp v%d, v%d, v%d row_shl:4 row_mask:0xf bank_mask:0x5" % (SQ + i, SQ + i, SQ + i))
    for i in range(2):
        L.append("v_add_f32_dpp v%d, v%d, v%d row_shr:4 row_mask:0xf bank_mask:0xa" % (SQ + i, SQ + i + 2, SQ + i + 2))
    for i in range(2):
        L.append("v_add_f32_dpp v%d, v%d, v%d quad_perm:[1,0,3,2] row_mask:0xf bank_mask:0xf" % (SQ + i, SQ + i, SQ + i))
    L.append("v_cndmask_b32_e64 v%d, v%d, v%d, s[72:73]" % (SQ, SQ, SQ + 1))
    L.append("v_add_f32_dpp v13, v%d, v%d quad_perm:[2,3,0,1] row_mask:0xf bank_mask:0xf" % (SQ, SQ))
    L.append("buffer_atomic_add_f32 v13, v7, %s, s66 offen offset:%d sc1" % (sWS, 128 * r))
    return L

def pw_ops(u):
    X, T = XB[u & 1], TB[u & 1]
    for i in range(8):
        I("v_pk_fma_f32 %s, %s, %s, s[68:69]" % (vr(T + 2 * i, 2), vr(X + 2 * i, 2), vr(X + 2 * i, 2)))
    for i in range(8):
        I("v_pk_mul_f32 %s, %s, %s neg_lo:[1,0] neg_hi:[1,0]" % (vr(T + 2 * i, 2), vr(X + 2 * i, 2), vr(T + 2 * i, 2)))

def stretch(u, half, trans, extras):
    T = TB[u & 1]
    tr = ["%s v%d, v%d" % (trans, T + i, T + i) for i in range(16)]
    ntr = [2, 2, 2, 2, 3, 5]
    has = u + 1 < 42
    ex = list(extras)
    per = [0] * 6
    for n in range(len(ex)):
        if n < 4:
            per[n] += 1
        else:
            per[(n - 4) % 6] += 1
    for g in range(6):
        ks = 6 * half + g
        if has:
            I(mfma1(u + 1, ks))
            if u + 2 < 42:
                I(b_read(u + 2, ks))
        for _ in range(ntr[g]):
            I(tr.pop(0))
        if g == 4:
            nu, nh = (u + 1, 1) if half == 0 else (u + 2, 0)
            if nu < 42:
                A.wait_regs([ar(BR + 4 * (6 * nh + 5)), a_reg(nu // 7, 6 * nh + 5)])
        for _ in range(per[g]):
            I(ex.pop(0))

def p1_addr():
    I("v_and_b32 v8, 24, v0")
    I("v_lshrrev_b32 v9, 3, v0")
    I("v_and_b32 v9, 4, v9")
    I("v_or_b32 v8, v8, v9")
    I("v_lshrrev_b32 v9, 1, v0")
    I("v_and_b32 v9, 2, v9")
    I("v_or_b32 v8, v8, v9")
    I("v_and_b32 v9, 1, v0")
    I("v_or_b32 v8, v8, v9")
    I("v_lshlrev_b32 v8, 2, v8")
    I("v_and_b32 v9, 2, v0")
    I("v_lshlrev_b32 v9, 29, v9")
    I("v_or_b32 v7, v8, v9")
    I("s_and_b32 s66, s2, 7")
    I("s_mul_i32 s66, s66, 3072")
    I("s_mul_i32 s50, s3, 768")
    I("s_add_u32 s66, s66, s50")
    I("s_add_u32 s66, s66, %d" % SUMS)

def phase1():
    pw_ops(0)
    for u in range(42):
        r, t = divmod(u, 7)
        X, T = XB[u & 1], TB[u & 1]
        ex = [[], []]
        if u == 1:
            I("s_barrier")
        if u > 0:
            ex = store_ops(u - 1)
        if t == 0 and r > 0:
            red = reduce_ops(r - 1)
            ex[0] = ex[0] + red[:16]
            ex[1] = ex[1] + red[16:]
        for rr in range(1, 6):
            first = 0 if rr == 1 else 7 * (rr - 1) - 1
            if first <= u < first + 4:
                for ks in range(3 * (u - first), 3 * (u - first) + 3):
                    ex[1].append("buffer_load_dwordx4 %s, v%d, %s, s%d offen offset:%d sc1" %
                                 (a_reg(rr, ks), 1 + (ks >> 2), sWS, 52 + rr, (ks & 3) * 1024))
        if u == 36:
            ex[1].append("buffer_load_dword v12, off, %s, 0 offset:128 sc1" % sD)
        stretch(u, 0, "v_exp_f32", ex[0])
        for i in range(8):
            I("v_pk_add_f32 %s, %s, s[70:71]" % (vr(T + 2 * i, 2), vr(T + 2 * i, 2)))
        stretch(u, 1, "v_rcp_f32", ex[1])
        for i in range(8):
            I("v_pk_mul_f32 %s, %s, %s" % (vr(T + 2 * i, 2), vr(X + 2 * i, 2), vr(T + 2 * i, 2)))
        for i in range(8):
            if t == 0:
                I("v_pk_mul_f32 %s, %s, %s" % (vr(SQ + 2 * i, 2), vr(T + 2 * i, 2), vr(T + 2 * i, 2)))
            else:
                I("v_pk_fma_f32 %s, %s, %s, %s" % (vr(SQ + 2 * i, 2), vr(T + 2 * i, 2), vr(T + 2 * i, 2), vr(SQ + 2 * i, 2)))
        if u + 1 < 42:
            pw_ops(u + 1)
        if t == 6:
            stamp()
    for s in reduce_ops(5):
        I(s)
    for hf in store_ops(41):
        for s in hf:
            I(s)

ACC2 = 80
def h_loc2(u):
    if u < 27:
        return 36 + 8 * (u - 14)
    if u < 41:
        return 144 + 8 * (u - 27)
    return 28

ITEMS = [(0, p) for p in range(7)] + [(1, p) for p in range(4)]
def acc_of(ab, p):
    return ACC2 + 16 * (p if ab == 0 else 7 + p)
def tile_s(ab, p):
    return "s65" if (ab == 1 and p == 3) else "s%d" % (58 + p)

VO = ((11, 13), (12, 15))
AF = (16, 24)
RAW = (32, 40, 48)
SB = (56, 64)
TMP = 72

def kinfo(k):
    rho, w2, s = k >> 3, (k & 7) >> 1, k & 1
    return rho, w2, s

def b2_read(k, p):
    rho, w2, s = kinfo(k)
    reg = (2 if p < 3 else 3) if rho % 2 == 0 else (4 if p < 3 else 7)
    return "ds_read_b128 %s, v%d offset:%d" % (ar(4 * p), reg, (7 * w2 + p) * 2048 + s * 1024)

def s_reads(k):
    rho, w2, s = kinfo(k)
    off = (32 * (6 * w2 + rho) + 16 * s) * 4
    b = SB[k & 1]
    return ["ds_read_b128 %s, v8 offset:%d" % (vr(b), off), "ds_read_b128 %s, v8 offset:%d" % (vr(b + 4), off + 16)]

def raw_loads(k):
    L = []
    if k % 4 == 0 and k > 0:
        L.append("s_add_u32 s67, s67, 4096")
    for ab in range(2):
        L.append("buffer_load_dwordx4 %s, v%d, %s, s67 offen offset:%d sc1" % (vr(RAW[k % 3] + 4 * ab), 9 + ab, sWS, (k & 3) * 1024))
    return L

def scale_ops(k):
    L = []
    S = SB[k & 1]
    for ab in range(2):
        R = RAW[k % 3] + 4 * ab
        D = AF[k & 1] + 4 * ab
        t = TMP + 4 * ab
        for i in range(4):
            L.append("v_lshlrev_b32 v%d, 16, v%d" % (t + i, R + i))
        for i in range(4):
            L.append("v_and_b32 v%d, s79, v%d" % (R + i, R + i))
        for i in range(4):
            L.append("v_mul_f32 v%d, v%d, v%d" % (t + i, S + 2 * i, t + i))
            L.append("v_mul_f32 v%d, v%d, v%d" % (R + i, S + 2 * i + 1, R + i))
        for i in range(4):
            L.append("v_cvt_pk_bf16_f32 v%d, v%d, v%d" % (D + i, t + i, R + i))
    return L

def barrier_phase():
    stamp("2")
    A.wait(vm=0, lg=0)
    spin("L_c2", 128, 6, 12)
    A.vm = []
    stamp("2")
    I("s_barrier")
    stamp("12")
    I("s_cmp_lg_u32 s3, 0")
    I("s_cbranch_scc1 L_noarr")
    I("s_and_b32 s50, s2, 15")
    I("s_lshl_b32 s50, s50, 7")
    I("s_add_u32 s50, s50, %d" % CNT)
    I("s_mov_b64 exec, 1")
    I("v_mov_b32 v13, 1")
    I("buffer_atomic_add v13, off, %s, s50 sc1" % sWS)
    I("s_mov_b64 exec, -1")
    A.label("L_noarr")
    I("s_and_b32 s50, s3, 1")
    I("s_lshr_b32 s51, s3, 1")
    I("s_mul_i32 s74, s51, 3")
    I("s_lshl_b32 s75, s50, 1")
    I("s_add_u32 s75, s75, s74")
    I("s_add_u32 s74, s74, 1")
    I("s_mul_i32 s76, s48, 224")
    I("s_add_u32 s76, s76, s49")
    I("s_mul_i32 s76, s76, 384")
    I("s_cmp_lg_u32 s50, 0")
    for p in range(7):
        I("s_mov_b32 s77, %d" % (p * 172032))
        I("s_cselect_b32 s77, %d, s77" % (((p + 4) % 7) * 172032))
        I("s_add_u32 s%d, s76, s77" % (58 + p))
        I("s_cmp_lg_u32 s50, 0")
    I("s_cselect_b32 s65, %s, s61" % HUGE)
    I("v_lshrrev_b32 v11, 2, v0")
    I("v_mul_u32_u24 v11, 384, v11")
    I("v_lshrrev_b32 v12, 4, v0")
    I("v_xor_b32 v12, v12, v0")
    I("v_and_b32 v12, 3, v12")
    I("v_lshl_add_u32 v11, v12, 4, v11")
    I("s_lshl_b32 s77, s74, 6")
    I("v_add_u32 v12, s77, v11")
    I("s_lshl_b32 s77, s75, 6")
    I("v_add_u32 v11, s77, v11")
    I("v_add_u32 v13, 86016, v11")
    I("v_add_u32 v15, 86016, v12")
    I("s_lshl_b32 s82, s3, 13")
    def x_dma(n):
        ab, p = ITEMS[n]
        for row in range(2):
            I("s_add_u32 m0, s82, %d" % ((n % 4) * 2048 + row * 1024))
            I("buffer_load_dwordx4 v%d, %s, %s offen lds" % (VO[ab][row], sX, tile_s(ab, p)), tag="x%d" % n)
    def x_rd(n):
        A.wait_tag("x%d" % n)
        for s in range(2):
            I("ds_read_b128 %s, v%d offset:%d" % (ar(8 * (n % 3) + 4 * s), 77 + s, (n % 4) * 2048))
    def x_mm(n):
        ab, p = ITEMS[n]
        acc = vr(acc_of(ab, p), 16)
        A.wait_regs([ar(8 * (n % 3) + 4)])
        if n + 4 < 11:
            x_dma(n + 4)
        I("v_mfma_f32_32x32x16_bf16 %s, v[48:51], %s, %s" % (acc, ar(8 * (n % 3)), vr(16 if ab == 0 else 56, 16)))
        I("v_mfma_f32_32x32x16_bf16 %s, v[52:55], %s, %s" % (acc, ar(8 * (n % 3) + 4), acc))
    stamp("2")
    for n in range(4):
        x_dma(n)
    stamp("2")
    I("v_lshrrev_b32 v79, 5, v0")
    I("v_lshlrev_b32 v8, 4, v79")
    I("s_lshl_b32 s77, s75, 7")
    I("s_add_u32 s77, s77, %d" % BIAS)
    I("s_lshl_b32 s78, s74, 7")
    I("s_add_u32 s78, s78, %d" % BIAS)
    for g in range(4):
        I("buffer_load_dwordx4 %s, v8, %s, s77 offen offset:%d sc1" % (vr(16 + 4 * g), sWS, 32 * g))
    for g in range(4):
        I("buffer_load_dwordx4 %s, v8, %s, s78 offen offset:%d sc1" % (vr(56 + 4 * g), sWS, 32 * g))
    I("s_mul_i32 s77, s75, 49152")
    I("v_add_u32 v9, s77, v1")
    I("s_mul_i32 s77, s74, 49152")
    I("v_add_u32 v10, s77, v1")
    I("s_mov_b32 s67, %d" % W2F)
    for k in range(2):
        for s in raw_loads(k):
            I(s)
    I("s_mul_i32 s77, s3, 192")
    I("v_lshl_add_u32 v74, v0, 2, s77")
    I("v_cmp_gt_u32 vcc, 48, v0")
    I("v_lshlrev_b32 v75, 1, v74")
    I("v_mov_b32 v76, %s" % HUGE)
    I("v_cndmask_b32 v75, v76, v75, vcc")
    I("buffer_load_dwordx2 v[72:73], v75, %s, 0 offen" % sB)
    stamp("2")
    for i in range(8):
        I("v_accvgpr_write_b32 a%d, v%d" % (28 + i, TB[1] + i))
    for t in range(7):
        for s in range(2):
            I("ds_write_b128 v6, %s offset:%d" % (vr(96 + 8 * t + 4 * s), t * 2048 + s * 1024))
    I("v_lshlrev_b32 v75, 2, v74")
    I("v_cndmask_b32 v75, v76, v75, vcc")
    I("v_and_b32 v76, 0xfffffff3, v74")
    I("v_and_b32 v77, 4, v74")
    I("v_lshl_or_b32 v76, v77, 1, v76")
    I("v_and_b32 v77, 8, v74")
    I("v_lshrrev_b32 v77, 1, v77")
    I("v_or_b32 v76, v76, v77")
    I("v_lshlrev_b32 v76, 2, v76")
    I("v_add_u32 v76, %d, v76" % STAB)
    I("v_mov_b32 v77, %d" % DUMMY)
    I("v_cndmask_b32 v76, v77, v76, vcc")
    I("s_mov_b64 s[80:81], vcc")
    I("s_mul_i32 s77, s50, 8192")
    I("s_add_u32 s77, s77, %d" % BUF0)
    I("v_add_u32 v2, s77, v1")
    I("v_add_u32 v4, %d, v2" % (BUF1 - BUF0))
    I("s_mul_i32 s77, s50, -6144")
    I("s_add_u32 s77, s77, %d" % BUF0)
    I("v_add_u32 v3, s77, v1")
    I("v_add_u32 v7, %d, v3" % (BUF1 - BUF0))
    I("v_lshlrev_b32 v8, 5, v79")
    I("v_add_u32 v8, %d, v8" % STAB)
    I("v_and_b32 v74, 31, v0")
    I("v_bfe_u32 v77, v0, 2, 2")
    I("v_xor_b32 v77, v77, v79")
    I("v_lshlrev_b32 v77, 4, v77")
    I("v_lshl_add_u32 v77, v74, 6, v77")
    I("v_add_u32 v77, s82, v77")
    I("v_xor_b32 v78, 32, v77")
    I("v_lshlrev_b32 v79, 3, v79")
    I("v_sub_u32 v79, v74, v79")
    I("v_ashrrev_i32 v79, 1, v79")
    I("v_and_b32 v74, 1, v74")
    I("v_lshlrev_b32 v74, 4, v74")
    I("v_mov_b32 v55, 0x3f80")
    I("v_lshlrev_b32 v74, v74, v55")
    for s in range(2):
        for d in range(4):
            I("v_cmp_eq_u32 vcc, %d, v79" % (8 * s + d))
            I("v_cndmask_b32 v%d, 0, v74, vcc" % (48 + 4 * s + d))
    def mv(u):
        for i in range(8):
            I("v_accvgpr_write_b32 a%d, v%d" % (h_loc2(u) + i, 96 + 8 * (u - 7) + i))
    stamp("2")
    x_rd(0); x_rd(1)
    stamp("2")
    mv(14)
    x_mm(0); x_rd(2)
    mv(15)
    x_mm(1); x_rd(3)
    mv(16)
    x_mm(2)
    mv(17)
    x_mm(3)
    for u in range(18, 22):
        mv(u)
    stamp("2")
    x_rd(4); x_rd(5)
    stamp("2")
    mv(22)
    x_mm(4); x_rd(6)
    mv(23)
    x_mm(5); x_rd(7)
    mv(24)
    x_mm(6)
    mv(25)
    x_mm(7)
    mv(26)
    stamp("2")
    x_rd(8); x_rd(9)
    stamp("2")
    x_mm(8); x_rd(10)
    x_mm(9)
    x_mm(10)
    for s in raw_loads(2):
        I(s)
    for p in range(7):
        I(b2_read(0, p))
    stamp("12")
    A.wait(vm=0)
    stamp("2")
    I("s_cmp_lg_u32 s3, 0")
    I("s_cbranch_scc1 L_gdone")
    I("v_and_b32 v77, 15, v0")
    I("v_lshlrev_b32 v77, 7, v77")
    I("s_mov_b32 s77, %d" % CNT)
    I("s_mov_b32 s51, %d" % SPIN)
    A.label("L_gloop")
    I("buffer_load_dword v78, v77, %s, s77 offen sc1" % sWS)
    A.wait(vm=0)
    I("v_cmp_ne_u32 vcc, 14, v78")
    I("s_cmp_eq_u64 vcc, 0")
    I("s_cbranch_scc1 L_gdone")
    I("s_sub_u32 s51, s51, 1")
    I("s_cmp_lg_u32 s51, 0")
    I("s_cbranch_scc1 L_gloop")
    A.label("L_gdone")
    I("s_barrier")
    stamp("12")
    I("s_mov_b32 s77, %d" % SUMS)
    rows = [16, 20, 24, 28, 56, 60, 64, 68]
    for r in range(8):
        if r:
            I("s_add_u32 s77, s77, 3072")
        I("buffer_load_dwordx4 %s, v75, %s, s77 offen sc1" % (vr(rows[r]), sWS))
    for (x, y) in ((0, 1), (2, 3), (4, 5), (6, 7), (0, 2), (4, 6), (0, 4)):
        for hf in range(2):
            I("v_pk_add_f32 %s, %s, %s" % (vr(rows[x] + 2 * hf, 2), vr(rows[x] + 2 * hf, 2), vr(rows[y] + 2 * hf, 2)))
    stamp("2")
    I("v_mov_b32 v20, %s" % f32(1e-6))
    for i in range(4):
        I("v_fmaak_f32 v%d, %s, v%d, v20" % (16 + i, "X", 16 + i) if False else "v_fmamk_f32 v%d, v%d, %s, v20" % (16 + i, 16 + i, f32(1.0 / SG ** 2)))
    for i in range(4):
        I("v_sqrt_f32 v%d, v%d" % (16 + i, 16 + i))
    I("v_add_f32 v20, v16, v17")
    I("v_add_f32 v21, v18, v19")
    I("v_add_f32 v20, v20, v21")
    I("v_cndmask_b32_e64 v20, 0, v20, s[80:81]")
    for n in (8, 4, 2, 1):
        I("v_add_f32_dpp v20, v20, v20 row_ror:%d row_mask:0xf bank_mask:0xf" % n)
    I("v_mov_b32 v21, v20")
    I("v_permlane32_swap_b32 v20, v21")
    I("v_add_f32 v20, v20, v21")
    I("v_mov_b32 v21, v20")
    I("v_permlane16_swap_b32 v20, v21")
    I("v_add_f32 v20, v20, v21")
    I("s_lshl_b32 s77, s3, 2")
    I("s_add_u32 s77, s77, %d" % PART)
    I("v_mov_b32 v21, s77")
    I("ds_write_b32 v21, v20")
    I("v_mov_b32 v21, %d" % PART)
    I("v_lshlrev_b32 v24, 16, v72")
    I("v_and_b32 v25, 0xffff0000, v72")
    I("v_lshlrev_b32 v26, 16, v73")
    I("v_and_b32 v27, 0xffff0000, v73")
    for i in range(4):
        I("v_mul_f32 v%d, v%d, v%d" % (16 + i, 16 + i, 24 + i))
    A.wait(lg=0)
    stamp("2")
    I("s_barrier")
    I("ds_read_b128 v[24:27], v21")
    I("v_add_f32 v24, v24, v25")
    I("v_add_f32 v26, v26, v27")
    I("v_add_f32 v24, v24, v26")
    I("v_mov_b32 v25, %s" % f32(1e-6 * SG))
    I("v_fmac_f32 v25, %s, v24" % f32(SG / 768))
    I("v_rcp_f32 v25, v25")
    I("v_mov_b32 v26, %s" % f32(1.0 / SG))
    for i in range(4):
        I("v_fma_f32 v%d, v%d, v25, v26" % (16 + i, 16 + i))
    I("ds_write_b128 v76, v[16:19]")
    A.wait(lg=0)
    stamp("2")
    I("s_barrier")
    stamp("2")
    for s in s_reads(0) + s_reads(1):
        I(s)
    for s in scale_ops(0):
        I(s)
    for s in raw_loads(3):
        I(s)
    stamp("12")

def phase2():
    for k in range(48):
        rho, w2, s = kinfo(k)
        kk = k & 7
        fill = []
        if k + 2 < 48:
            fill += s_reads(k + 2)
        if k + 1 < 48:
            fill += scale_ops(k + 1)
        if k + 4 < 48:
            fill += raw_loads(k + 4)
        wr = []
        if 1 <= rho <= 4 and kk < 7:
            u = 7 * (rho + 1) + kk
            for hf in range(2):
                wr.append("ds_write_b128 v%d, %s offset:%d" % (5 if (rho + 1) % 2 == 0 else 6, ar(h_loc2(u) + 4 * hf), kk * 2048 + hf * 1024))
        fill = fill[:2] + wr + fill[2:]
        order = []
        for p in range(7):
            order.append((0, p))
            if p < 4:
                order.append((1, p))
        nf = len(fill)
        pend = []
        done = 0
        for n, (ab, p) in enumerate(order):
            acc = vr(acc_of(ab, p), 16)
            if n in (0, 4, 8):
                A.wait_regs([ar({0: 4, 4: 12, 8: 24}[n])])
            I("v_mfma_f32_32x32x16_bf16 %s, %s, %s, %s" % (acc, vr(AF[k & 1] + 4 * ab), ar(4 * p), acc))
            last = (p >= 4) or ab == 1
            if last and k + 1 < 48:
                if kk == 7 and p < 3:
                    pend.append(b2_read(k + 1, p))
                    if p == 2:
                        A.wait(lg=0)
                        I("s_barrier")
                        for s_ in pend:
                            I(s_)
                else:
                    I(b2_read(k + 1, p))
            tgt = (nf * (n + 1) + 10) // 11
            while done < tgt:
                I(fill[done]); done += 1
        if kk == 7:
            stamp()
    stamp("2")
    I("v_and_b32 v72, 31, v0")
    I("v_bfe_u32 v73, v0, 2, 2")
    I("v_lshlrev_b32 v73, 4, v73")
    I("v_lshl_add_u32 v72, v72, 6, v73")
    I("v_lshrrev_b32 v73, 5, v0")
    I("v_lshl_add_u32 v72, v73, 3, v72")
    I("v_add_u32 v72, s82, v72")
    for g in range(1, 4):
        I("v_xor_b32 v%d, %d, v72" % (72 + g, 16 * g))
    I("v_add_u32 v76, s82, v1")
    def st(n):
        ab, p = ITEMS[n]
        for row in range(2):
            I("buffer_store_dwordx4 %s, v%d, %s, %s offen" % (vr(40 + 8 * (n % 3) + 4 * row), VO[ab][row], sO, tile_s(ab, p)))
    for n, (ab, p) in enumerate(ITEMS):
        acc = acc_of(ab, p)
        D = 16 + 8 * (n % 3)
        for g in range(4):
            for j in range(2 * g, 2 * g + 2):
                I("v_cvt_pk_bf16_f32 v%d, v%d, v%d" % (D + j, acc + 2 * j, acc + 2 * j + 1))
        for g in range(4):
            I("ds_write_b64 v%d, %s offset:%d" % (72 + g, vr(D + 2 * g, 2), (n % 4) * 2048))
        for row in range(2):
            I("ds_read_b128 %s, v76 offset:%d" % (vr(40 + 8 * (n % 3) + 4 * row), (n % 4) * 2048 + row * 1024))
        if n:
            st(n - 1)
    st(10)
    finish()

def finish():
    if OPT["stamps"]:
        stamp("2")
        A.wait(vm=0)
        stamp("123456")
        I("s_lshl_b32 s50, s2, 2")
        I("s_add_u32 s50, s50, s3")
        I("s_lshl_b32 s50, s50, 8")
        I("s_add_u32 s50, s50, %d" % DUMP)
        I("v_lshlrev_b32 v16, 2, v0")
        I("buffer_store_dword v14, v16, %s, s50 offen" % sWS)
    I("s_endpgm")

def dump_lds(nbytes):
    A.wait(vm=0, lg=0)
    I("s_barrier")
    I("v_lshlrev_b32 v8, 4, v15")
    I("s_mul_i32 s50, s2, 163840")
    I("s_add_u32 s50, s50, %d" % DUMP)
    for i in range(nbytes // 4096):
        I("ds_read_b128 v[16:19], v8")
        I("buffer_store_dwordx4 v[16:19], v8, %s, s50 offen" % sWS)
        I("v_add_u32 v8, 4096, v8")
        A.wait(vm=0)
    I("s_endpgm")

HEAD = """; ConvNeXt-V2 block: dwconv3x3 + LN + pw1 + GELU + GRN + pw2 + residual, one persistent launch.
; WG 0..31 repack weights, WG 32..255 own one 14x16 pixel patch each (hidden activations stay on chip).
; @launch grid=(256,1,1) block=(256,1,1) lds=163840
.amdgcn_target "amdgcn-amd-amdhsa--gfx950"
.text
.globl %s_kernel
.p2align 8
.type %s_kernel,@function
%s_kernel:
""" % (NAME, NAME, NAME)
TAIL = """.section .rodata,"a"
.p2align 6
.amdhsa_kernel %s_kernel
  .amdhsa_next_free_vgpr 512
  .amdhsa_next_free_sgpr 102
  .amdhsa_accum_offset 256
  .amdhsa_group_segment_fixed_size 0
  .amdhsa_kernarg_size 72
  .amdhsa_user_sgpr_count 2
  .amdhsa_user_sgpr_kernarg_segment_ptr 1
  .amdhsa_system_sgpr_workgroup_id_x 1
.end_amdhsa_kernel
""" % NAME

prologue()
helpers()
phase0()
if OPT.get("exp"):
    A.raw("L_pf:")
elif OPT["dbg"] == "Y":
    dump_lds(163840)
else:
    phase1()
    barrier_phase()
    phase2()
A.raw("L_end:")
out = sys.argv[1] if len(sys.argv) > 1 else "cdna_kernels/%s.s" % NAME
if OPT.get("align", "1") == "1":
    from align import align
    fx, bad, nbytes, badlist = align(HEAD, A.out, TAIL)
    print("align: fixed", fx, "unfixed", bad, "bytes", nbytes, file=sys.stderr)
    if OPT.get("showbad"):
        for i in badlist[:int(OPT["showbad"])]:
            print("   ", i, A.out[i - 1], "|", A.out[i], file=sys.stderr)
open(out, "w").write(HEAD + "\n".join(A.out) + "\n" + TAIL)
print("stamps", stamp_n[0], "instrs", A.count, "nop states", A.nops, "waits", A.waits, file=sys.stderr)
```
